```python
import torch

def _softmax(x, axis=-1):
    return torch.softmax(x, dim=axis)
def _gelu(x):
    return torch.nn.functional.gelu(x, approximate="tanh")
def _silu(x):
    return torch.nn.functional.silu(x)
def _sigmoid(x):
    return torch.sigmoid(x)
def _layernorm(x, axis=-1, eps=1e-5):
    m = x.mean(dim=axis, keepdim=True)
    v = x.var(dim=axis, keepdim=True, unbiased=False)
    return (x - m) / torch.sqrt(v + eps)
def _scatter_add(tgt, idx, src, axis=0):
    return tgt.clone().index_add_(axis, idx, src)
def _segment_sum(src, seg, n):
    out = torch.zeros((n,) + src.shape[1:], dtype=src.dtype)
    return out.index_add_(0, seg, src)
def _pad(x, pw):
    flat = tuple(v for pair in reversed(pw) for v in pair)
    return torch.nn.functional.pad(x, flat)

kernel_name = 'parallel_sum__spectral_gfnet__glu_gated_bilinear__prompt'

def setup_inputs():

    _w = (lambda a: (lambda t: t.to(torch.bfloat16) if t.is_floating_point() else t)(torch.as_tensor(a)))
    def _A_setup():
        B, S, D = 1, 2048, 640
        Df = D // 2 + 1
        return {
            "x": _w((lambda *s: torch.randn(*s, dtype=torch.bfloat16) * 0.05)(B, S, D)),
            "w_r": _w((lambda *s: torch.randn(*s, dtype=torch.bfloat16) * 0.4)(S, Df) * 0.02),
            "w_i": _w((lambda *s: torch.randn(*s, dtype=torch.bfloat16) * 0.4)(S, Df) * 0.02),
        }
    _A_in = _A_setup()

    def _B_setup():
        B, S, D, F = 1, 2048, 640, 1728
        return {
            "x": _w((lambda *s: torch.randn(*s, dtype=torch.bfloat16) * 0.05)(B, S, D)),
            "w_gate": _w((lambda *s: torch.randn(*s, dtype=torch.bfloat16) * 0.2)(D, F) * (D ** -0.5)),
            "w_up": _w((lambda *s: torch.randn(*s, dtype=torch.bfloat16) * 0.2)(D, F) * (D ** -0.5)),
            "w_down": _w((lambda *s: torch.randn(*s, dtype=torch.bfloat16) * 0.2)(F, D) * (F ** -0.5)),
        }
    _B_in = _B_setup()

    return {
        "A_x": _A_in["x"],
        "A_w_r": _A_in["w_r"],
        "A_w_i": _A_in["w_i"],
        "B_x": _B_in["x"],
        "B_w_gate": _B_in["w_gate"],
        "B_w_up": _B_in["w_up"],
        "B_w_down": _B_in["w_down"],
    }

def reference(A_x, A_w_r, A_w_i, B_x, B_w_gate, B_w_up, B_w_down):
    def _A_ref(x, w_r, w_i):
        B, S, D = x.shape
        X = (lambda x, axes=(-2,-1): torch.fft.rfft2(x.float(), dim=axes))(x, axes=(-2, -1))
        W = w_r + 1j * w_i
        X = X * W
        y = (lambda x, s, axes=(-2,-1): torch.fft.irfft2(x, s=s, dim=axes).to(torch.bfloat16))(X, (S, D), axes=(-2, -1))
        return y

    def _B_ref(x, w_gate, w_up, w_down):
        g = torch.einsum("bsd,df->bsf", x, w_gate)
        u = torch.einsum("bsd,df->bsf", x, w_up)
        h = g * u
        return torch.einsum("bsf,fd->bsd", h, w_down)

    x = A_x
    xn = _layernorm(x, axis=-1)
    return x + _A_ref(xn, A_w_r, A_w_i) + _B_ref(xn, B_w_gate, B_w_up, B_w_down)
```

```python
import re

def v(i, n=1):
    return f"v{i}" if n == 1 else f"v[{i}:{i+n-1}]"

def s(i, n=1):
    return f"s{i}" if n == 1 else f"s[{i}:{i+n-1}]"

_REG = re.compile(r"(?<![\w.])(-|\|)?([vsa])(\d+|\[(\d+):(\d+)\])")

def regs_of(tok):
    out = set()
    tok = tok.strip()
    if tok in ("vcc", "vcc_lo", "vcc_hi"):
        return {("s", "vcc")}
    if tok == "exec":
        return {("s", "exec")}
    if tok == "m0":
        return {("s", "m0")}
    m = re.fullmatch(r"-?\|?(?:abs\()?([vsa])(?:(\d+)|\[(\d+):(\d+)\])\)?\|?", tok)
    if m:
        k = m.group(1)
        if m.group(2) is not None:
            out.add((k, int(m.group(2))))
        else:
            for r in range(int(m.group(3)), int(m.group(4)) + 1):
                out.add((k, r))
    return out

TRANS = ("v_exp_f32", "v_log_f32", "v_rcp_f32", "v_rsq_f32", "v_sqrt_f32", "v_sin_f32", "v_cos_f32", "v_rcp_iflag_f32")

class Ins:
    __slots__ = ("text", "op", "ops", "kind", "w", "r", "passes", "srcc", "dpp", "states", "lds_dma", "wide_store", "data")
    def __init__(self, text):
        self.text = text
        t = text.split(";")[0].strip()
        parts = t.split(None, 1)
        self.op = parts[0]
        rest = parts[1] if len(parts) > 1 else ""
        toks = [x.strip() for x in rest.split(",")] if rest else []
        mods = ""
        if toks:
            lt = toks[-1].split(None, 1)
            toks[-1] = lt[0]
            mods = lt[1] if len(lt) > 1 else ""
        clean = []
        for i, x in enumerate(toks):
            clean.append(x)
        joined = rest
        m = re.search(r"\s(op_sel|op_sel_hi|neg_lo|neg_hi|quad_perm|offset|offset0|offset1|row_|bank_mask|row_mask|offen|idxen|lds|sc0|sc1|nt|cbsz|abid|blgp|off\b|clamp|mul:|div:|bound_ctrl|wave_|dst_sel|src0_sel|src1_sel|dst_unused)", " " + joined)
        if m:
            opnd = (" " + joined)[:m.start()].strip()
            mods = (" " + joined)[m.start():]
        else:
            opnd = joined
            mods = ""
        toks = [x.strip() for x in opnd.split(",") if x.strip()]
        self.ops = toks
        self.w = set(); self.r = set(); self.passes = 0; self.srcc = set()
        self.dpp = ("quad_perm" in mods or "row_" in mods.replace("row_mask", "") or "wave_" in mods)
        self.states = 1
        self.lds_dma = False; self.wide_store = False; self.data = set()
        op = self.op
        R = regs_of
        if op == "s_nop":
            self.kind = "nop"; self.states = int(toks[0], 0) + 1
        elif op.startswith("v_mfma"):
            self.kind = "mfma"
            self.passes = 8 if "32x32x16" in op else 4
            self.w = R(toks[0]); self.r = R(toks[1]) | R(toks[2]) | R(toks[3]); self.srcc = R(toks[3])
        elif op.startswith("v_cmp"):
            self.kind = "valu"; self.w = R(toks[0])
            for x in toks[1:]: self.r |= R(x)
        elif op in ("v_readfirstlane_b32", "v_readlane_b32"):
            self.kind = "valu"; self.w = R(toks[0])
            for x in toks[1:]: self.r |= R(x)
        elif op.startswith("v_permlane") and "swap" in op:
            self.kind = "valu"; self.w = R(toks[0]) | R(toks[1]); self.r = set(self.w)
        elif op.startswith("v_"):
            self.kind = "valu"
            self.w = R(toks[0])
            srcs = toks[1:]
            if op.startswith(("v_add_co", "v_sub_co", "v_addc_co", "v_subb_co", "v_subrev_co", "v_div_scale", "v_mad_u64_u32")):
                self.w |= R(toks[1]); srcs = toks[2:]
            for x in srcs: self.r |= R(x)
            if op.startswith(("v_fmac", "v_mac", "v_dot2c", "v_pk_fmac", "v_writelane")):
                self.r |= R(toks[0])
            if op.startswith("v_cndmask") and len(toks) == 3:
                self.r.add(("s", "vcc"))
        elif op.startswith("ds_"):
            self.kind = "ds"
            if op.startswith(("ds_read", "ds_bpermute", "ds_permute", "ds_swizzle")) or "_rtn" in op:
                self.w = R(toks[0])
                for x in toks[1:]: self.r |= R(x)
            else:
                for x in toks: self.r |= R(x)
        elif op.startswith(("buffer_", "global_")):
            self.kind = "vmem"
            is_lds = re.search(r"\blds\b", mods) is not None or "load_lds" in op
            if op in ("buffer_inv", "buffer_wbl2"):
                pass
            elif is_lds:
                self.lds_dma = True
                for x in toks: self.r |= R(x)
                self.r.add(("s", "m0"))
            elif "load" in op:
                self.w = R(toks[0])
                for x in toks[1:]: self.r |= R(x)
            elif "atomic" in op:
                for x in toks: self.r |= R(x)
                if "sc0" in mods: self.w = R(toks[0])
            else:
                for x in toks: self.r |= R(x)
                d = toks[0] if op.startswith("buffer_") else toks[1]
                self.data = R(d)
                self.wide_store = op.endswith(("x4", "x3"))
        elif op.startswith("s_"):
            self.kind = "salu"
            nodst = ("s_cmp", "s_cbranch", "s_branch", "s_waitcnt", "s_barrier", "s_endpgm", "s_sleep", "s_setprio", "s_bitcmp")
            if op.startswith(nodst):
                for x in toks: self.r |= R(x)
            else:
                if toks: self.w = R(toks[0])
                for x in toks[1:]: self.r |= R(x)
                if "saveexec" in op: self.w.add(("s", "exec"))
        else:
            raise ValueError("unknown op: " + text)


class State:
    def __init__(self):
        self.valu_w = {}; self.trans_w = {}; self.mfma_w = {}; self.mfma_rc = {}
        self.valu_sw = {}; self.store_d = {}; self.m0 = None
        self.mfma_cd = {}
        self.dl_w = {}
    def copy(self):
        o = State()
        for k in ("valu_w", "trans_w", "mfma_w", "mfma_rc", "valu_sw", "store_d", "mfma_cd", "dl_w"):
            setattr(o, k, dict(getattr(self, k)))
        o.m0 = self.m0
        return o
    def merge(self, b):
        for k in ("valu_w", "trans_w", "valu_sw", "store_d", "dl_w"):
            d = getattr(self, k)
            for r, e in getattr(b, k).items():
                d[r] = min(d.get(r, 99), e)
        for k in ("mfma_w", "mfma_rc"):
            d = getattr(self, k)
            for r, (e, p) in getattr(b, k).items():
                if r not in d or (e - (12 if p == 8 else 8)) < (d[r][0] - (12 if d[r][1] == 8 else 8)):
                    d[r] = (e, p)
        for r, x in b.mfma_cd.items():
            if self.mfma_cd.get(r) != x:
                self.mfma_cd[r] = None
        if b.m0 is not None:
            self.m0 = b.m0 if self.m0 is None else min(self.m0, b.m0)
    def advance(self, n):
        for k in ("valu_w", "trans_w", "valu_sw", "store_d", "dl_w"):
            d = getattr(self, k)
            for r in list(d):
                d[r] += n
                if d[r] > 24: del d[r]
        for k in ("mfma_w", "mfma_rc"):
            d = getattr(self, k)
            for r in list(d):
                e, p = d[r]
                if e + n > 24: del d[r]
                else: d[r] = (e + n, p)
        if self.m0 is not None:
            self.m0 += n
            if self.m0 > 8: self.m0 = None
    def need(self, i):
        n = 0
        def req(d, regs, gap):
            nonlocal n
            for r in regs:
                if r in d: n = max(n, gap - d[r])
        def reqm(d, regs, g4, g8):
            nonlocal n
            for r in regs:
                if r in d:
                    e, p = d[r]
                    n = max(n, (g8 if p == 8 else g4) - e)
        if i.kind == "mfma":
            req(self.valu_w, i.r, 2)
            req(self.dl_w, i.r, 3)
            ab = i.r - i.srcc if i.srcc != i.w else (regs_of(i.ops[1]) | regs_of(i.ops[2]))
            reqm(self.mfma_w, regs_of(i.ops[1]) | regs_of(i.ops[2]), 8, 12)
            key = (frozenset(i.srcc), i.passes)
            for r in i.srcc:
                if r in self.mfma_w and self.mfma_cd.get(r) != key:
                    e, p = self.mfma_w[r]
                    n = max(n, (10 if p == 8 else 6) - e)
        elif i.kind == "valu":
            reqm(self.mfma_w, i.r | i.w, 8, 12)
            reqm(self.mfma_rc, i.w, 3, 7)
            if i.op.startswith("v_dot2"):
                req(self.dl_w, regs_of(i.ops[1]) | regs_of(i.ops[2]), 3)
            else:
                req(self.dl_w, i.r | i.w, 3)
            if i.op not in TRANS: req(self.trans_w, i.r, 1)
            sread = {r for r in i.r if r[0] == "s"}
            req(self.valu_sw, sread, 4 if i.op in ("v_readlane_b32", "v_writelane_b32") else 2)
            if i.op in ("v_readfirstlane_b32", "v_readlane_b32"): req(self.valu_w, i.r, 1)
            if i.op.startswith("v_permlane") or i.dpp: req(self.valu_w, i.r, 2)
            req(self.store_d, i.w, 2)
        elif i.kind in ("ds", "vmem"):
            req(self.dl_w, i.r | i.w, 3)
            reqm(self.mfma_w, i.r | i.w, 8, 12)
            req(self.valu_sw, {r for r in i.r if r[0] == "s"}, 5)
            req(self.store_d, i.w, 1)
            if i.lds_dma and self.m0 is not None: n = max(n, 1 - self.m0)
        elif i.kind == "salu":
            req(self.valu_sw, {r for r in i.r if r[0] == "s"}, 1)
        return max(n, 0)
    def commit(self, i):
        self.advance(i.states)
        if i.kind == "mfma":
            key = (frozenset(i.w), i.passes)
            for r in i.w:
                self.mfma_w[r] = (0, i.passes); self.mfma_cd[r] = key
                self.valu_w.pop(r, None)
            for r in i.srcc: self.mfma_rc[r] = (0, i.passes)
        elif i.kind == "valu":
            for r in i.w:
                if r[0] == "s": self.valu_sw[r] = 0
                else:
                    self.valu_w[r] = 0; self.mfma_w.pop(r, None)
                    if i.op.startswith("v_dot2"): self.dl_w[r] = 0
                    else: self.dl_w.pop(r, None)
                    if i.op in TRANS: self.trans_w[r] = 0
                    else: self.trans_w.pop(r, None)
        elif i.kind == "vmem":
            if i.wide_store:
                for r in i.data: self.store_d[r] = 0
        elif i.kind == "salu":
            if ("s", "m0") in i.w: self.m0 = 0


class Asm:
    def __init__(self):
        self.L = []
    def __call__(self, *lines):
        for t in lines:
            for x in t.split("\n"):
                x = x.strip()
                if x: self.L.append(x)
    def raw(self, t):
        self.L.append(("raw", t))
    def label(self, n):
        self.L.append(n + ":")
    def finish(self):
        items = self.L
        labels = {}
        for idx, x in enumerate(items):
            if isinstance(x, str) and x.endswith(":"): labels[x[:-1]] = idx
        parsed = [None if (not isinstance(x, str) or x.endswith(":") or x.startswith((";", "."))) else Ins(x) for x in items]
        extra = [0] * (len(items) + 1)
        entry = {}
        def run(start_state, idx, limit_states=None, record=True):
            st = start_state
            used = 0
            j = idx
            while j < len(items):
                x = items[j]
                if isinstance(x, str) and x.endswith(":"):
                    if record and x[:-1] in entry: st.merge(entry[x[:-1]])
                    j += 1; continue
                ins = parsed[j]
                if ins is None:
                    j += 1; continue
                st.advance(extra[j])
                used += extra[j]
                nd = st.need(ins)
                if nd > 0:
                    if record:
                        extra[j] += nd; st.advance(nd); nnop[0] += nd
                    else:
                        return nd
                st.commit(ins)
                used += ins.states
                if ins.op.startswith(("s_cbranch", "s_branch")):
                    tgt = ins.ops[0]
                    if tgt in labels:
                        if labels[tgt] > j:
                            if record:
                                if tgt in entry: entry[tgt].merge(st)
                                else: entry[tgt] = st.copy()
                        elif record:
                            while True:
                                need = run(st.copy(), labels[tgt], 26, False)
                                if not need: break
                                extra[j] += need; st.advance(need); nnop[0] += need
                    if ins.op == "s_branch":
                        if not record: return 0
                        st = State()
                if ins.op == "s_endpgm":
                    if not record: return 0
                    st = State()
                if limit_states is not None and used > limit_states: return 0
                j += 1
            return 0
        nnop = [0]
        run(State(), 0)
        out = []
        for idx, x in enumerate(items):
            n = extra[idx]
            while n > 0:
                k = min(n, 16); out.append(f"    s_nop {k-1}"); n -= k
            if isinstance(x, tuple): out.append(x[1])
            elif x.endswith(":"): out.append(x)
            else: out.append("    " + x)
        self.nops = nnop[0]
        return "\n".join(out) + "\n"
```

```python
from asmlib import *
from layout import *

STAGE = 49152
SIDE = 3 * STAGE
MU_OFF = SIDE
SPIN_LIMIT = 1 << 16

MU_OFF = SIDE + 12288
RS_OFF = MU_OFF + 1024
CS_OFF = RS_OFF + 1024

S_X, S_WA, S_WB, S_WS, S_MI = 8, 12, 16, 20, 24
sWAVE, sRB, sCB, sV = 28, 29, 30, 31
sFILL, sKX, sKW, sIT, sM0X, sM0W, sDELTA, sRD = 32, 33, 34, 35, 36, 37, 38, 39
sT0, sT1, sT2, sT3, sT4, sT5 = 40, 41, 42, 43, 44, 45
sDBG = 50
sWR, sWI, sWD = 52, 54, 56
sC0, sC1 = 58, 59
sKB, sNG, sTID = 62, 63, 46
sNEG, sPOS = 74, 75

vLANE, vE8, vC8, vT0, vT1, vT2, vT3 = 1, 2, 3, 4, 5, 6, 7


def srd(a, base_s, ptr_lo, nrec, sub=0):
    if sub:
        a(f"s_sub_u32 s{base_s}, s{ptr_lo}, {sub}", f"s_subb_u32 s{base_s+1}, s{ptr_lo+1}, 0")
    else:
        a(f"s_mov_b32 s{base_s}, s{ptr_lo}", f"s_mov_b32 s{base_s+1}, s{ptr_lo+1}")
    a(f"s_mov_b32 s{base_s+2}, {nrec}", f"s_mov_b32 s{base_s+3}, 0x00020000")


def stamp(a, idx, cfg, clock=False, vt=(30, 31)):
    if not cfg.get("stamps"): return
    a("s_memtime s[70:71]" if clock else "s_memrealtime s[70:71]", "s_waitcnt lgkmcnt(0)")
    a(f"v_mov_b32 v{vt[0]}, s70", f"s_lshl_b32 s72, s2, 3", f"s_add_u32 s72, s72, s{sWAVE}", "s_lshl_b32 s72, s72, 6",
      f"s_add_u32 s72, s72, {cfg['stamp_base'] + idx*4}", f"v_mov_b32 v{vt[1]}, s72",
      f"buffer_store_dword v{vt[0]}, v{vt[1]}, s[{S_WS}:{S_WS+3}], 0 offen")


def interleave(a, mfmas, fillers, every=1, start=0):
    k = 0
    for j, m in enumerate(mfmas):
        a(m)
        if j >= start and (j - start) % every == 0 and k < len(fillers):
            a(fillers[k]); k += 1
    while k < len(fillers):
        a(fillers[k]); k += 1


vXR = 8
vWR = 10
vSET = [32, 80]
vACC = 128


def mfma_path(a, dft, cfg):
    tag = "D" if dft else "G"
    w = sWAVE
    if cfg.get("prio"): a(f"s_setprio {cfg['prio']}")
    i16, g = vT0, vT1
    a(f"v_and_b32 v{i16}, 15, v{vLANE}", f"v_lshrrev_b32 v{g}, 4, v{vLANE}", f"s_lshl_b32 s{sM0X}, s{w}, 13")
    if not dft:
        a(f"v_lshrrev_b32 v{vT2}, 1, v{i16}", f"v_lshlrev_b32 v{vT3}, 7, v{i16}")
    else:
        a(f"v_lshrrev_b32 v{vT2}, 2, v{i16}", f"v_lshlrev_b32 v{vT3}, 3, v{vT2}", f"v_and_b32 v14, 3, v{i16}",
          f"v_or_b32 v{vT3}, v{vT3}, v14", f"v_lshlrev_b32 v{vT3}, 7, v{vT3}",
          f"v_lshlrev_b32 v{vT2}, 1, v{vT2}", f"v_bfe_u32 v14, v{i16}, 1, 1", f"v_or_b32 v{vT2}, v{vT2}, v14")
    a(f"v_add_u32 v{vT3}, s{sM0X}, v{vT3}")
    for kk in range(2):
        a(f"v_or_b32 v14, {4*kk}, v{g}", f"v_xor_b32 v14, v14, v{vT2}", f"v_lshlrev_b32 v14, 4, v14", f"v_add_u32 v{vXR+kk}, v{vT3}, v14")
    if not dft:
        a(f"v_lshrrev_b32 v14, 5, v{vLANE}", f"v_lshlrev_b32 v14, 12, v14",
          f"v_and_b32 v15, 1, v{g}", f"v_lshlrev_b32 v16, 3, v15", f"v_lshrrev_b32 v17, 2, v{i16}", f"v_add_u32 v16, v16, v17",
          f"v_lshlrev_b32 v16, 7, v16", f"v_add_u32 v14, v14, v16",
          f"v_and_b32 v16, 3, v{vLANE}", f"v_lshlrev_b32 v16, 3, v16", f"v_add_u32 v14, v14, v16", f"v_add_u32 v14, 32768, v14",
          f"v_lshrrev_b32 v17, 1, v17", f"v_lshlrev_b32 v15, 1, v15", f"v_or_b32 v15, v15, v17")
        for cf in range(4):
            a(f"v_xor_b32 v16, {cf}, v15", f"v_lshlrev_b32 v16, 5, v16", f"v_add_u32 v{vWR+cf}, v14, v16")
        nWR = 4
    else:
        a(f"v_lshrrev_b32 v14, 1, v{i16}", f"v_lshlrev_b32 v15, 7, v{i16}", f"v_add_u32 v15, 32768, v15")
        for kk in range(2):
            a(f"v_or_b32 v16, {4*kk}, v{g}", f"v_xor_b32 v16, v16, v14", f"v_lshlrev_b32 v16, 4, v16", f"v_add_u32 v{vWR+kk}, v15, v16")
        nWR = 2
    for r in range(128): a(f"v_mov_b32 v{vACC+r}, 0")
    for r in range(48): a(f"v_mov_b32 v{vSET[0]+r}, 0")
    a(f"s_mov_b32 s{sIT}, 0", f"s_mov_b32 s{sRD}, 0", f"s_mov_b32 s{sNEG}, {-2*STAGE & 0xffffffff}", f"s_mov_b32 s{sPOS}, {STAGE}")
    stamp(a, 1, cfg)

    def xoff(xi): return (xi >> 1) * 4096 + (xi & 1) * 512 if dft else xi * 2048
    def reads(kk, st):
        X = vSET[st]; W = X + 16
        L = []
        if cfg.get("abl_nords"): return L
        for xi in range(4):
            L.append(f"ds_read_b128 v[{X+4*xi}:{X+4*xi+3}], v{vXR+kk} offset:{xoff(xi)}")
        for wf in range(8):
            if dft:
                L.append(f"ds_read_b128 v[{W+4*wf}:{W+4*wf+3}], v{vWR+kk} offset:{wf*2048}")
            else:
                mat, cf = wf >> 2, wf & 3
                for rho in range(2):
                    L.append(f"ds_read_b64_tr_b16 v[{W+4*wf+2*rho}:{W+4*wf+2*rho+1}], v{vWR+cf} offset:{kk*8192+mat*2048+rho*512}")
        return L
    def mfmas(st):
        X = vSET[st]; W = X + 16
        L = []
        for wf in range(8):
            for xi in range(4):
                T = vACC + 4 * (wf * 4 + xi)
                xo = f"v[{X+4*xi}:{X+4*xi+3}]"; wo = f"v[{W+4*wf}:{W+4*wf+3}]"
                A_, B_ = (xo, wo) if dft else (wo, xo)
                L.append(f"v_mfma_f32_16x16x32_bf16 v[{T}:{T+3}], {A_}, {B_}, v[{T}:{T+3}]")
        return L

    a.label(f"L_loop{tag}")
    a("s_waitcnt lgkmcnt(0)", "s_barrier")
    if cfg.get("loopstamps"):
        a("s_memrealtime s[70:71]", "s_waitcnt lgkmcnt(0)", "v_mov_b32 v30, s70", "s_lshl_b32 s72, s2, 3", f"s_add_u32 s72, s72, s{sWAVE}",
          "s_lshl_b32 s72, s72, 6", f"s_lshl_b32 s73, s{sIT}, 2", "s_add_u32 s72, s72, s73",
          f"s_add_u32 s72, s72, {cfg['stamp_base'] + 16}", "v_mov_b32 v31, s72",
          f"buffer_store_dword v30, v31, s[{S_WS}:{S_WS+3}], 0 offen")
    interleave(a, mfmas(0), reads(0, 1))
    a("s_waitcnt lgkmcnt(0)")
    upd = [f"s_add_u32 s{sRD}, s{sRD}, {STAGE}", f"s_cmp_eq_u32 s{sRD}, {3*STAGE}",
           f"s_cselect_b32 s{sDELTA}, s{sNEG}, s{sPOS}", f"s_cselect_b32 s{sRD}, 0, s{sRD}"]
    upd += [f"v_add_u32 v{vXR+kk}, s{sDELTA}, v{vXR+kk}" for kk in range(2)]
    upd += [f"v_add_u32 v{vWR+k}, s{sDELTA}, v{vWR+k}" for k in range(nWR)]
    upd += [f"s_add_u32 s{sIT}, s{sIT}, 1"]
    interleave(a, mfmas(1), reads(1, 0) + upd)
    a(f"s_cmp_lt_u32 s{sIT}, 10", f"s_cbranch_scc1 L_loop{tag}")
    a("s_waitcnt lgkmcnt(0)")
    for m in mfmas(0): a(m)
    stamp(a, 2, cfg)

    st = cfg.get("k1_store", "")
    if not dft:
        a(f"s_lshl_b32 s{sT0}, s{w}, 8", f"v_lshlrev_b32 v{vT2}, 2, v{i16}", f"v_add_u32 v{vT2}, s{sT0}, v{vT2}",
          f"v_add_u32 v{vT2}, {MU_OFF}, v{vT2}")
        for xi in range(4):
            a(f"ds_read_b32 v{32+2*xi}, v{vT2} offset:{xi*64}", f"ds_read_b32 v{33+2*xi}, v{vT2} offset:{1024+xi*64}")
        a(f"v_lshlrev_b32 v{vT3}, 4, v{g}", f"v_add_u32 v{vT3}, {CS_OFF}, v{vT3}")
        CS = 48
        for mat in range(2):
            for cf in range(4):
                a(f"ds_read_b128 v[{CS+16*mat+4*cf}:{CS+16*mat+4*cf+3}], v{vT3} offset:{(64*mat+16*cf)*4}")
        a(f"s_lshl_b32 s{sT0}, s{sRB}, 4", f"s_lshl_b32 s{sT1}, s{w}, 2", f"s_add_u32 s{sT0}, s{sT0}, s{sT1}",
          f"s_mul_i32 s{sT0}, s{sT0}, {NKB}", f"s_lshl_b32 s{sT1}, s{sCB}, 1", f"s_add_u32 s{sT0}, s{sT0}, s{sT1}",
          f"s_lshl_b32 s{sT0}, s{sT0}, 10", f"s_add_u32 s{sT0}, s{sT0}, {WS_AF}", f"v_lshlrev_b32 v{vT2}, 4, v{vLANE}")
        a("s_waitcnt lgkmcnt(0)")
        for xi in range(4):
            a(f"v_mul_f32 v{33+2*xi}, v{33+2*xi}, v{33+2*xi}")
        for xi in range(4):
            mr = f"v[{32+2*xi}:{33+2*xi}]"
            for q in range(2):
                D = 40 + 4 * (q & 1)
                for c in range(2):
                    cf = 2 * q + c
                    G = vACC + 4 * (cf * 4 + xi); U = vACC + 4 * ((4 + cf) * 4 + xi)
                    for p in range(2):
                        g2 = f"v[{G+2*p}:{G+2*p+1}]"; u2 = f"v[{U+2*p}:{U+2*p+1}]"
                        a(f"v_pk_fma_f32 {g2}, v[{CS+4*cf+2*p}:{CS+4*cf+2*p+1}], {mr}, {g2} op_sel_hi:[1,0,1] neg_lo:[0,1,0] neg_hi:[0,1,0]")
                        a(f"v_pk_fma_f32 {u2}, v[{CS+16+4*cf+2*p}:{CS+16+4*cf+2*p+1}], {mr}, {u2} op_sel_hi:[1,0,1] neg_lo:[0,1,0] neg_hi:[0,1,0]")
                    for p in range(2):
                        g2 = f"v[{G+2*p}:{G+2*p+1}]"; u2 = f"v[{U+2*p}:{U+2*p+1}]"
                        a(f"v_pk_mul_f32 {g2}, {g2}, {u2}")
                    for p in range(2):
                        g2 = f"v[{G+2*p}:{G+2*p+1}]"
                        a(f"v_pk_mul_f32 {g2}, {g2}, {mr} op_sel:[0,1] op_sel_hi:[1,1]")
                    U0 = vACC + 4 * ((4 + 2 * q) * 4 + xi)
                    for p in range(2):
                        a(f"v_cvt_pk_bf16_f32 v{U0+2*c+p}, v{G+2*p}, v{G+2*p+1}")
                a(f"s_add_u32 s{sT1}, s{sT0}, {xi*NKB*1024 + q*1024}")
                a(f"buffer_store_dwordx4 v[{U0}:{U0+3}], v{vT2}, s[{S_WS}:{S_WS+3}], s{sT1} offen {st}")
    else:
        a(f"s_lshl_b32 s{sT0}, s{w}, 8", f"v_lshlrev_b32 v{vT2}, 5, v{g}", f"v_add_u32 v{vT2}, s{sT0}, v{vT2}",
          f"v_add_u32 v{vT2}, {MU_OFF}, v{vT2}")
        for q in range(2):
            MU, RS = 32 + 16 * q, 40 + 16 * q
            a(f"ds_read_b128 v[{MU}:{MU+3}], v{vT2} offset:{q*128}", f"ds_read_b128 v[{MU+4}:{MU+7}], v{vT2} offset:{q*128+16}",
              f"ds_read_b128 v[{RS}:{RS+3}], v{vT2} offset:{1024+q*128}", f"ds_read_b128 v[{RS+4}:{RS+7}], v{vT2} offset:{1024+q*128+16}")
        a(f"s_sub_u32 s{sT1}, s{sCB}, 27", f"s_lshl_b32 s{sT1}, s{sT1}, 7", f"v_add_u32 v16, s{sT1}, v{i16}",
          f"v_cmp_eq_u32 vcc, 0, v16", "v_mov_b32 v18, 0", "v_mov_b32 v19, 0x44200000", "v_cndmask_b32 v18, v18, v19, vcc")
        a(f"s_lshl_b32 s{sT0}, s{sRB}, 5", f"s_lshl_b32 s{sT2}, s{w}, 3", f"s_add_u32 s{sT0}, s{sT0}, s{sT2}",
          f"s_mul_i32 s{sT0}, s{sT0}, {640*16}", f"s_add_u32 s{sT0}, s{sT0}, {WS_P2}",
          f"v_mul_u32_u24 v{vT3}, {640*16}, v{g}", f"v_lshlrev_b32 v16, 4, v16", f"v_add_u32 v{vT3}, v{vT3}, v16")
        a("s_waitcnt lgkmcnt(0)")
        n = 0
        for q in range(2):
            MU, RS = 32 + 16 * q, 40 + 16 * q
            for wf in range(8):
                D = 64 + 4 * (n % 8); n += 1
                for u in range(2):
                    T = vACC + 4 * (wf * 4 + 2 * q + u)
                    for p in range(2):
                        r2 = f"v[{T+2*p}:{T+2*p+1}]"
                        if wf == 0:
                            a(f"v_pk_fma_f32 {r2}, v[{MU+4*u+2*p}:{MU+4*u+2*p+1}], v[18:19], {r2} op_sel_hi:[1,0,1] neg_lo:[0,1,0] neg_hi:[0,1,0]")
                        a(f"v_pk_mul_f32 {r2}, {r2}, v[{RS+4*u+2*p}:{RS+4*u+2*p+1}]")
                    for p in range(2):
                        a(f"v_cvt_pk_bf16_f32 v{D+2*u+p}, v{T+2*p}, v{T+2*p+1}")
                a(f"s_add_u32 s{sT1}, s{sT0}, {4*q*640*16 + wf*256}")
                a(f"buffer_store_dwordx4 v[{D}:{D+3}], v{vT3}, s[{S_WS}:{S_WS+3}], s{sT1} offen {st}")
    stamp(a, 3, cfg)
    stamp(a, 15, cfg, clock=True)
    a("s_endpgm")


class VM:
    def __init__(self, a): self.a = a; self.ops = []
    def op(self, text, tag): self.a(text); self.ops.append(tag)
    def wait(self, *tags):
        last = max(i for i, t in enumerate(self.ops) if t in tags)
        n = len(self.ops) - 1 - last
        self.a(f"s_waitcnt vmcnt({min(n, 63)})")


def loader_path(a, dft, cfg):
    tag = "D" if dft else "G"
    V = sV
    vm = VM(a)
    vXD, vWD = 8, 16
    vST, vCS, vRL = 24, 36, 64
    a(f"s_sub_u32 s{V}, s{sWAVE}, 4")
    if not dft:
        a(f"s_lshl_b32 s{sT0}, s{V}, 4", f"v_add_u32 v{vT0}, s{sT0}, v{vE8}", f"v_mul_u32_u24 v{vT0}, 3456, v{vT0}",
          f"s_lshl_b32 s{sT0}, s{sCB}, 7", f"v_add_u32 v{vT0}, s{sT0}, v{vT0}",
          f"v_bfe_u32 v{vT3}, v{vE8}, 1, 1", f"v_lshlrev_b32 v{vT3}, 1, v{vT3}", f"v_xor_b32 v{vT3}, v{vT3}, v{vC8}",
          f"v_lshlrev_b32 v{vT2}, 4, v{vT3}", f"v_add_u32 v{vWD}, v{vT0}, v{vT2}",
          f"v_xor_b32 v{vT3}, 4, v{vT3}", f"v_lshlrev_b32 v{vT3}, 4, v{vT3}", f"v_add_u32 v{vWD+1}, v{vT0}, v{vT3}",
          f"v_add_u32 v{vWD+1}, {8*3456-1024}, v{vWD+1}")
    else:
        a(f"s_sub_u32 s{sT0}, s{sCB}, 27", f"s_lshl_b32 s{sT0}, s{sT0}, 7", f"s_lshl_b32 s{sT1}, s{V}, 5",
          f"s_add_u32 s{sT0}, s{sT0}, s{sT1}", f"v_add_u32 v{vT0}, s{sT0}, v{vE8}", f"v_mul_u32_u24 v{vT0}, 1280, v{vT0}",
          f"v_lshrrev_b32 v{vT1}, 1, v{vE8}", f"v_xor_b32 v{vT1}, v{vT1}, v{vC8}", f"v_xor_b32 v{vT2}, 4, v{vT1}",
          f"v_lshlrev_b32 v{vT1}, 4, v{vT1}", f"v_lshlrev_b32 v{vT2}, 4, v{vT2}")
        for i in range(4):
            a(f"v_add_u32 v{vWD+i}, v{vT0}, v{vT2 if i & 1 else vT1}")
            c = i * 8 * 1280 - i * 1024
            if c: a(f"v_add_u32 v{vWD+i}, {c}, v{vWD+i}")
    a(f"s_lshr_b32 s{sT4}, s{sRB}, 1", f"s_and_b32 s{sT4}, s{sT4}, 1", f"s_lshl_b32 s{sT4}, s{sT4}, 10",
      f"s_and_b32 s{sT1}, s{sRB}, 1", f"s_lshl_b32 s{sT1}, s{sT1}, 8", f"s_add_u32 s{sT4}, s{sT4}, s{sT1}",
      f"s_lshr_b32 s{sT1}, s{sRB}, 2", f"s_lshl_b32 s{sT1}, s{sT1}, 5", f"s_add_u32 s{sT4}, s{sT4}, s{sT1}",
      f"s_lshl_b32 s{sT1}, s{V}, 3", f"s_add_u32 s{sT0}, s{sT4}, s{sT1}")
    a(f"v_lshrrev_b32 v{vT0}, 2, v{vE8}", f"v_lshlrev_b32 v{vT0}, 3, v{vT0}", f"v_and_b32 v{vT1}, 3, v{vE8}",
      f"v_add_u32 v{vT0}, v{vT0}, v{vT1}", f"v_lshlrev_b32 v{vT0}, 6, v{vT0}", f"v_add_u32 v{vT0}, s{sT0}, v{vT0}",
      f"v_mul_u32_u24 v{vT0}, 1280, v{vT0}")
    for i in range(8):
        if not dft:
            if i == 0: a(f"v_lshrrev_b32 v{vT1}, 1, v{vE8}", f"v_xor_b32 v{vT1}, v{vT1}, v{vC8}")
            x = 4 * (i & 1)
        else:
            if i == 0: a(f"v_bfe_u32 v{vT1}, v{vE8}, 1, 1", f"v_xor_b32 v{vT1}, v{vT1}, v{vC8}")
            x = 2 * (i & 3)
        c = i * 1280 - (i & 3) * 1024
        if x: a(f"v_xor_b32 v{vT2}, {x}, v{vT1}", f"v_lshlrev_b32 v{vT2}, 4, v{vT2}")
        else: a(f"v_lshlrev_b32 v{vT2}, 4, v{vT1}")
        if c: a(f"v_add_u32 v{vT2}, {c}, v{vT2}")
        a(f"v_add_u32 v{vXD+i}, v{vT0}, v{vT2}")
    a(f"s_lshl_b32 s{sM0X}, s{V}, 13", f"s_lshl_b32 s{sM0W}, s{V}, 12", f"s_add_u32 s{sM0W}, s{sM0W}, 32768")
    kwstep = 128 if dft else 64 * 3456

    def stage(k):
        base = (k % 3) * STAGE
        if cfg.get("abl_nodma") and k >= 2:
            vm.ops += [f"S{k}"] * 0; vm.ops.append(f"S{k}"); a("s_nop 0", f"buffer_load_dword v126, v{vLANE}, s[{S_X}:{S_X+3}], 0 offen"); return
        a(f"s_mov_b32 s{sKX}, {k*128}", f"s_mov_b32 s{sKW}, {k*kwstep}", f"s_add_u32 m0, s{sM0W}, {base}")
        for i in range(4):
            if dft: t = f"buffer_load_dwordx4 v{vWD+i}, s[{S_WA}:{S_WA+3}], s{sKW} offen offset:{i*1024} lds"
            else:
                sr = S_WA if i < 2 else S_WB
                t = f"buffer_load_dwordx4 v{vWD+(i&1)}, s[{sr}:{sr+3}], s{sKW} offen offset:{i*1024} lds"
            vm.op(t, f"S{k}")
        for h in range(2):
            a(f"s_add_u32 m0, s{sM0X}, {base + h*4096}", "s_nop 0")
            for i in range(4 * h, 4 * h + 4):
                vm.op(f"buffer_load_dwordx4 v{vXD+i}, s[{S_X}:{S_X+3}], s{sKX} offen offset:{(i&3)*1024} lds", f"S{k}")

    stage(0)
    a(f"v_lshrrev_b32 v{vT0}, 5, v{vLANE}", f"s_lshl_b32 s{sT0}, s{V}, 1", f"v_add_u32 v{vT0}, s{sT0}, v{vT0}")
    a(f"v_lshrrev_b32 v{vT1}, 2, v{vT0}", f"v_lshlrev_b32 v{vT1}, 3, v{vT1}", f"v_and_b32 v{vT2}, 3, v{vT0}",
      f"v_add_u32 v{vT1}, v{vT1}, v{vT2}", f"v_lshlrev_b32 v{vT1}, 6, v{vT1}", f"s_add_u32 s{sT0}, s{sT4}, s{sCB}",
      f"v_add_u32 v{vT1}, s{sT0}, v{vT1}", f"v_mul_u32_u24 v{vT1}, 1280, v{vT1}",
      f"v_and_b32 v{vT2}, 31, v{vLANE}", f"v_lshlrev_b32 v{vT2}, 3, v{vT2}", f"v_add_u32 v{vT1}, v{vT1}, v{vT2}",
      f"v_mov_b32 v20, v{vT0}")
    for i in range(5):
        vm.op(f"buffer_load_dwordx2 v[{vST+2*i}:{vST+2*i+1}], v{vT1}, s[{S_X}:{S_X+3}], 0 offen offset:{i*256}", "ST")
    if not dft:
        a(f"s_cmp_lt_u32 s{V}, 2", f"s_cselect_b32 s{S_MI}, s{S_WA}, s{sC0}", f"s_cselect_b32 s{S_MI+1}, s{S_WA+1}, s{sC1}",
          f"s_mov_b32 s{S_MI+2}, {640*3456}", f"s_mov_b32 s{S_MI+3}, 0x00020000")
        a(f"s_mul_i32 s{sT0}, s{sRB}, 80", f"s_and_b32 s{sT1}, s{V}, 1", f"s_mul_i32 s{sT1}, s{sT1}, 40", f"s_add_u32 s{sT0}, s{sT0}, s{sT1}",
          f"v_add_u32 v{vT0}, s{sT0}, v{vE8}", f"v_mul_u32_u24 v{vT0}, 3456, v{vT0}",
          f"s_lshl_b32 s{sT0}, s{sCB}, 7", f"v_add_u32 v{vT0}, s{sT0}, v{vT0}", f"v_lshlrev_b32 v{vT1}, 4, v{vC8}",
          f"v_add_u32 v{vT0}, v{vT0}, v{vT1}", f"s_mov_b32 s{sT0}, 0")
        for i in range(5):
            vm.op(f"buffer_load_dwordx4 v[{vCS+4*i}:{vCS+4*i+3}], v{vT0}, s[{S_MI}:{S_MI+3}], s{sT0} offen", "CS")
            a(f"s_add_u32 s{sT0}, s{sT0}, {8*3456}")
    stage(1)
    stamp(a, 1, cfg, vt=(126, 127))
    vm.wait("S0"); a("s_barrier")
    stage(2)
    vm.wait("ST")
    a("v_mov_b32 v21, 0", "v_mov_b32 v22, 0")
    for i in range(10):
        a(f"v_lshlrev_b32 v{vT0}, 16, v{vST+i}", f"v_and_b32 v{vT1}, 0xffff0000, v{vST+i}",
          f"v_add_f32 v21, v21, v{vT0}", f"v_add_f32 v22, v22, v{vT1}")
    def red32(r):
        for mod in ("quad_perm:[1,0,3,2]", "quad_perm:[2,3,0,1]", "row_half_mirror", "row_ror:8"):
            a(f"v_add_f32_dpp v{r}, v{r}, v{r} {mod} row_mask:0xf bank_mask:0xf")
        a(f"v_mov_b32 v{vT0}, v{r}", f"v_permlane16_swap_b32 v{r}, v{vT0}", f"v_add_f32 v{r}, v{r}, v{vT0}")
    a("v_add_f32 v21, v21, v22"); red32(21)
    a(f"v_mul_f32 v22, {np.float32(1/640).view(np.uint32):#x}, v21")
    a("v_mov_b32 v21, 0", "v_mov_b32 v23, 0")
    for i in range(10):
        a(f"v_lshlrev_b32 v{vT0}, 16, v{vST+i}", f"v_and_b32 v{vT1}, 0xffff0000, v{vST+i}",
          f"v_sub_f32 v{vT0}, v{vT0}, v22", f"v_sub_f32 v{vT1}, v{vT1}, v22",
          f"v_fmac_f32 v21, v{vT0}, v{vT0}", f"v_fmac_f32 v23, v{vT1}, v{vT1}")
    a("v_add_f32 v21, v21, v23"); red32(21)
    a(f"v_mov_b32 v23, {np.float32(1e-5).view(np.uint32):#x}", f"v_fmac_f32 v23, {np.float32(1/640).view(np.uint32):#x}, v21",
      "v_rsq_f32 v23, v23")
    a(f"s_lshl_b32 s{sT0}, s{sRB}, 8", f"s_lshl_b32 s{sT1}, s{sCB}, 3", f"s_add_u32 s{sT0}, s{sT0}, s{sT1}",
      f"v_add_u32 v{vT0}, s{sT0}, v20", f"v_lshlrev_b32 v{vT0}, 3, v{vT0}", f"v_add_u32 v{vT0}, {WS_STAT}, v{vT0}",
      f"v_and_b32 v{vT1}, 31, v{vLANE}", f"v_cmp_eq_u32 vcc, 0, v{vT1}", "s_and_saveexec_b64 s[60:61], vcc")
    vm.op(f"buffer_store_dwordx2 v[22:23], v{vT0}, s[{S_WS}:{S_WS+3}], 0 offen sc1", "PUB")
    a("s_mov_b64 exec, s[60:61]")
    vm.wait("S1"); a("s_barrier")
    if not dft:
        vm.wait("CS")
        C = 56
        for q in range(8): a(f"v_mov_b32 v{C+q}, 0")
        for i in range(5):
            for q in range(4):
                r = vCS + 4 * i + q
                a(f"v_lshlrev_b32 v{vT0}, 16, v{r}", f"v_and_b32 v{vT1}, 0xffff0000, v{r}",
                  f"v_add_f32 v{C+2*q}, v{C+2*q}, v{vT0}", f"v_add_f32 v{C+2*q+1}, v{C+2*q+1}, v{vT1}")
        for q in range(8):
            a(f"v_add_f32_dpp v{C+q}, v{C+q}, v{C+q} row_ror:8 row_mask:0xf bank_mask:0xf")
        for op in ("v_permlane16_swap_b32", "v_permlane32_swap_b32"):
            for q in range(8): a(f"v_mov_b32 v{24+q}, v{C+q}")
            for q in range(8): a(f"{op} v{C+q}, v{24+q}")
            for q in range(8): a(f"v_add_f32 v{C+q}, v{C+q}, v{24+q}")
        a(f"s_lshl_b32 s{sT0}, s{sCB}, 3", f"s_add_u32 s{sT0}, s{sT0}, s{sRB}", f"s_lshl_b32 s{sT0}, s{sT0}, 1",
          f"s_and_b32 s{sT1}, s{V}, 1", f"s_add_u32 s{sT0}, s{sT0}, s{sT1}", f"s_lshl_b32 s{sT0}, s{sT0}, 9",
          f"s_lshr_b32 s{sT1}, s{V}, 1", f"s_lshl_b32 s{sT1}, s{sT1}, 8", f"s_add_u32 s{sT0}, s{sT0}, s{sT1}",
          f"s_add_u32 s{sT0}, s{sT0}, {WS_CSP}", f"v_lshlrev_b32 v{vT0}, 5, v{vC8}", f"v_add_u32 v{vT0}, s{sT0}, v{vT0}",
          f"v_cmp_eq_u32 vcc, 0, v{vE8}", "s_and_saveexec_b64 s[60:61], vcc")
        vm.op(f"buffer_store_dwordx4 v[{C}:{C+3}], v{vT0}, s[{S_WS}:{S_WS+3}], 0 offen sc1", "PUB")
        vm.op(f"buffer_store_dwordx4 v[{C+4}:{C+7}], v{vT0}, s[{S_WS}:{S_WS+3}], 0 offen offset:16 sc1", "PUB")
        a("s_mov_b64 exec, s[60:61]")
    stage(3)
    vm.wait("S2"); a("s_barrier")
    stage(4)
    vm.wait("S3"); a("s_barrier")
    srd(a, S_MI, sDBG, 256)
    a(f"s_lshl_b32 s{sT0}, s{sRB}, 2", f"s_add_u32 s{sT1}, s{sCB}, 32", f"s_lshl_b32 s{sT1}, s{sT1}, 2",
      f"v_mov_b32 v20, s{sT0}", f"v_mov_b32 v{vT1}, s{sT1}", f"v_cmp_eq_u32 vcc, 1, v{vLANE}",
      f"v_cndmask_b32 v20, v20, v{vT1}, vcc", "v_mov_b32 v21, 1")
    a(f"s_cmp_eq_u32 s{V}, 0", f"s_cselect_b64 s[60:61], {3 if not dft else 1}, 0", "s_mov_b64 s[64:65], exec",
      "s_mov_b64 exec, s[60:61]", "s_cbranch_execz L_l_nosig" + tag)
    a(f"buffer_atomic_add v21, v20, s[{S_MI}:{S_MI+3}], 0 offen")
    a.label("L_l_nosig" + tag)
    a("s_mov_b64 exec, s[64:65]")
    stage(5)
    vm.wait("S4"); a("s_barrier")
    a(f"s_lshl_b32 s{sTID}, s2, 2", f"s_add_u32 s{sTID}, s{sTID}, s{V}")
    a(f"s_mul_i32 s{sT0}, s2, 3", f"s_add_u32 s{sT0}, s{sT0}, s{V}")
    a(f"s_cmp_eq_u32 s{V}, 3", "s_cbranch_scc1 L_l_wp3" + tag)
    a(f"s_cmp_lt_u32 s{sT0}, 540", "s_cbranch_scc0 L_l_wp012" + tag)
    a(f"s_mov_b32 s{sTID}, 0")
    a(f"s_mul_i32 s{sKB}, s{sT0}, 6554", f"s_lshr_b32 s{sKB}, s{sKB}, 16", f"s_mul_i32 s{sT1}, s{sKB}, 10", f"s_sub_u32 s{sNG}, s{sT0}, s{sT1}")
    srd(a, S_MI, sWD, 1728 * 1280)
    a(f"s_lshl_b32 s{sT0}, s{sKB}, 5", f"v_add_u32 v{vT2}, s{sT0}, v{vE8}", f"v_mul_u32_u24 v{vT2}, 1280, v{vT2}",
      f"s_lshl_b32 s{sT0}, s{sNG}, 7", f"v_add_u32 v{vT2}, s{sT0}, v{vT2}", f"v_lshlrev_b32 v{vT3}, 4, v{vC8}", f"v_add_u32 v{vT2}, v{vT2}, v{vT3}")
    a(f"s_lshl_b32 s{sT0}, s{V}, 12", f"s_add_u32 m0, s{sT0}, {SIDE}")
    for i in range(4):
        if i: a(f"v_add_u32 v{vT2}, {8*1280-1024}, v{vT2}")
        a(f"buffer_load_dwordx4 v{vT2}, s[{S_MI}:{S_MI+3}], 0 offen offset:{i*1024} lds")
    a(f"v_mov_b32 v{vT2}, -1")
    for i in range(4):
        a(f"buffer_load_dword v{vRL+i}, v{vT2}, s[{S_MI}:{S_MI+3}], 0 offen")
    a("s_branch L_l_rl_issued" + tag)
    a.label("L_l_wp012" + tag)
    a(f"s_sub_u32 s{sT0}, s{sT0}, 540", "s_branch L_l_wp" + tag)
    a.label("L_l_wp3" + tag)
    a(f"s_add_u32 s{sT0}, s2, 228")
    a.label("L_l_wp" + tag)
    a(f"s_cmp_lt_u32 s{sT0}, 352", f"s_cselect_b32 s{sTID}, 1, 2")
    a(f"s_mul_i32 s{sKB}, s{sT0}, 5958", f"s_lshr_b32 s{sKB}, s{sKB}, 16",
      f"s_mul_i32 s{sT1}, s{sKB}, 11", f"s_sub_u32 s{sNG}, s{sT0}, s{sT1}", f"s_lshl_b32 s{sNG}, s{sNG}, 5", f"s_min_u32 s{sNG}, s{sNG}, 289")
    a(f"s_and_b32 s{sT0}, s{sKB}, 1", f"s_lshl_b32 s{sT0}, s{sT0}, 4", f"s_lshr_b32 s{sT1}, s{sKB}, 4", f"s_lshl_b32 s{sT1}, s{sT1}, 5",
      f"s_add_u32 s{sT0}, s{sT0}, s{sT1}", f"s_lshr_b32 s{sT1}, s{sKB}, 2", f"s_and_b32 s{sT1}, s{sT1}, 3", f"s_lshl_b32 s{sT1}, s{sT1}, 9",
      f"s_add_u32 s{sT0}, s{sT0}, s{sT1}", f"s_lshr_b32 s{sT1}, s{sKB}, 1", f"s_and_b32 s{sT1}, s{sT1}, 1", f"s_lshl_b32 s{sT1}, s{sT1}, 8",
      f"s_add_u32 s{sT0}, s{sT0}, s{sT1}")
    a(f"v_lshrrev_b32 v{vT2}, 2, v{vLANE}", f"v_and_b32 v{vT3}, 3, v{vLANE}", f"v_lshlrev_b32 v{vT3}, 6, v{vT3}",
      f"v_add_u32 v{vT2}, v{vT2}, v{vT3}", f"v_add_u32 v{vT2}, s{sT0}, v{vT2}", f"v_mul_u32_u24 v{vT2}, 642, v{vT2}",
      f"s_lshl_b32 s{sT0}, s{sNG}, 1", f"v_add_u32 v{vT2}, s{sT0}, v{vT2}")
    a(f"s_cmp_eq_u32 s{sTID}, 1", f"s_cselect_b32 s{sT2}, {2048*642}, 0")
    for h, ptr in enumerate((sWR, sWI)):
        a(f"s_mov_b32 s{S_MI}, s{ptr}", f"s_mov_b32 s{S_MI+1}, s{ptr+1}", f"s_mov_b32 s{S_MI+2}, s{sT2}", f"s_mov_b32 s{S_MI+3}, 0x00020000")
        for i in range(4):
            a(f"buffer_load_dwordx4 v[{vRL+16*h+4*i}:{vRL+16*h+4*i+3}], v{vT2}, s[{S_MI}:{S_MI+3}], 0 offen offset:{i*16}")
    a.label("L_l_rl_issued" + tag)
    vm.ops += ["RL"] * 8
    stage(6)
    vm.wait("S5"); a("s_barrier")
    srd(a, S_MI, sDBG, 256)
    vm.op(f"buffer_load_dword v21, v20, s[{S_MI}:{S_MI+3}], 0 offen sc1", "POLL")
    stage(7)
    vm.wait("S6"); a("s_barrier")
    vm.wait("POLL")
    a(f"s_mov_b32 s{sT1}, 0")
    a.label("L_l_poll" + tag)
    a("v_readlane_b32 s60, v21, 0", "v_readlane_b32 s61, v21, 1",
      "s_cmp_ge_u32 s60, 32", "s_cselect_b32 s60, 1, 0", f"s_cmp_ge_u32 s61, {0 if dft else 8}", "s_cselect_b32 s60, s60, 0",
      "s_cmp_eq_u32 s60, 1", "s_cbranch_scc1 L_l_polled" + tag,
      f"s_add_u32 s{sT1}, s{sT1}, 1", f"s_cmp_ge_u32 s{sT1}, {SPIN_LIMIT}", "s_cbranch_scc1 L_l_polled" + tag, "s_sleep 2")
    a(f"buffer_load_dword v21, v20, s[{S_MI}:{S_MI+3}], 0 offen sc1", "s_waitcnt vmcnt(0)", "s_branch L_l_poll" + tag)
    a.label("L_l_polled" + tag)
    a(f"s_lshl_b32 s{sT0}, s{sRB}, 8", f"s_lshl_b32 s{sT1}, s{V}, 6", f"s_add_u32 s{sT0}, s{sT0}, s{sT1}", f"s_lshl_b32 s{sT0}, s{sT0}, 3",
      f"s_add_u32 s{sT0}, s{sT0}, {WS_STAT}", f"v_lshlrev_b32 v{vT0}, 3, v{vLANE}")
    vm.op(f"buffer_load_dwordx2 v[22:23], v{vT0}, s[{S_WS}:{S_WS+3}], s{sT0} offen sc1", "F")
    if not dft:
        a(f"s_lshl_b32 s{sT0}, s{sCB}, 13", f"s_lshl_b32 s{sT1}, s{V}, 7", f"s_add_u32 s{sT0}, s{sT0}, s{sT1}", f"s_add_u32 s{sT0}, s{sT0}, {WS_CSP}",
          f"v_and_b32 v{vT0}, 31, v{vLANE}", f"v_lshlrev_b32 v{vT0}, 2, v{vT0}", f"v_lshrrev_b32 v{vT1}, 5, v{vLANE}",
          f"v_lshlrev_b32 v{vT1}, 12, v{vT1}", f"v_add_u32 v{vT0}, v{vT0}, v{vT1}")
        for r in range(8):
            vm.op(f"buffer_load_dword v{32+r}, v{vT0}, s[{S_WS}:{S_WS+3}], s{sT0} offen offset:{r*512} sc1", "F")
    stage(8)
    vm.wait("S7"); a("s_barrier")
    stage(9)
    vm.wait("F")
    a(f"s_lshl_b32 s{sT0}, s{V}, 8", f"v_lshlrev_b32 v{vT0}, 2, v{vLANE}", f"v_add_u32 v{vT0}, s{sT0}, v{vT0}", f"v_add_u32 v{vT0}, {MU_OFF}, v{vT0}")
    a(f"ds_write_b32 v{vT0}, v22", f"ds_write_b32 v{vT0}, v23 offset:1024")
    if not dft:
        for r in range(1, 8): a(f"v_add_f32 v32, v32, v{32+r}")
        a("v_mov_b32 v33, v32", "v_permlane32_swap_b32 v32, v33", "v_add_f32 v32, v32, v33")
        a(f"s_lshl_b32 s{sT0}, s{V}, 7", f"v_and_b32 v{vT0}, 31, v{vLANE}", f"v_lshlrev_b32 v{vT0}, 2, v{vT0}", f"v_add_u32 v{vT0}, s{sT0}, v{vT0}",
          f"v_add_u32 v{vT0}, {CS_OFF}, v{vT0}", f"ds_write_b32 v{vT0}, v32")
    vm.wait("S8"); a("s_waitcnt lgkmcnt(0)", "s_barrier")
    a(f"s_cmp_eq_u32 s{sTID}, 0", "s_cbranch_scc0 L_l_proc_wp" + tag)
    a(f"v_lshrrev_b32 v{vT0}, 4, v{vLANE}", f"v_lshlrev_b32 v{vT0}, 2, v{vT0}",
      f"v_and_b32 v{vT1}, 15, v{vLANE}", f"v_lshrrev_b32 v{vT1}, 2, v{vT1}", f"v_add_u32 v{vT0}, v{vT0}, v{vT1}", f"v_lshlrev_b32 v{vT0}, 7, v{vT0}",
      f"v_and_b32 v{vT1}, 3, v{vLANE}", f"v_lshlrev_b32 v{vT1}, 3, v{vT1}", f"v_add_u32 v{vT0}, v{vT0}, v{vT1}",
      f"s_lshl_b32 s{sT0}, s{V}, 12", f"s_add_u32 s{sT0}, s{sT0}, {SIDE}", f"v_add_u32 v{vT0}, s{sT0}, v{vT0}")
    for nbl in range(4):
        for rho in range(2):
            a(f"ds_read_b64_tr_b16 v[{vRL+4*nbl+2*rho}:{vRL+4*nbl+2*rho+1}], v{vT0} offset:{nbl*32+rho*2048}")
    a(f"s_lshl_b32 s{sT0}, s{sNG}, 2", f"s_mul_i32 s{sT0}, s{sT0}, 54", f"s_add_u32 s{sT0}, s{sT0}, s{sKB}", f"s_lshl_b32 s{sT0}, s{sT0}, 10",
      f"s_add_u32 s{sT0}, s{sT0}, {WS_WDF}", f"v_lshlrev_b32 v{vT1}, 4, v{vLANE}", "s_waitcnt lgkmcnt(0)")
    for nbl in range(4):
        a(f"buffer_store_dwordx4 v[{vRL+4*nbl}:{vRL+4*nbl+3}], v{vT1}, s[{S_WS}:{S_WS+3}], s{sT0} offen", f"s_add_u32 s{sT0}, s{sT0}, {54*1024}")
    a("s_branch L_l_proc_done" + tag)
    a.label("L_l_proc_wp" + tag)
    a(f"s_cmp_eq_u32 s{sTID}, 1", "s_cbranch_scc0 L_l_proc_done" + tag)
    a(f"s_lshl_b32 s{sT0}, s{sKB}, 8", f"s_lshl_b32 s{sT1}, s{sNG}, 13", f"s_add_u32 s{sT0}, s{sT0}, s{sT1}", f"s_add_u32 s{sT0}, s{sT0}, {WS_WP}",
      f"v_lshlrev_b32 v{vT1}, 2, v{vLANE}", "s_mov_b32 s60, 0x05040100", "s_mov_b32 s61, 0x07060302")
    for c in range(32):
        a(f"v_perm_b32 v{24+(c&7)}, v{vRL+16+(c>>1)}, v{vRL+(c>>1)}, s{60+(c&1)}")
        a(f"buffer_store_dword v{24+(c&7)}, v{vT1}, s[{S_WS}:{S_WS+3}], s{sT0} offen", f"s_add_u32 s{sT0}, s{sT0}, 8192")
    a.label("L_l_proc_done" + tag)
    a(f"s_cmp_eq_u32 s{sTID}, 1", "s_cbranch_scc1 L_l_w32" + tag, f"s_cmp_eq_u32 s{sTID}, 0", "s_cbranch_scc1 L_l_w4" + tag)
    a("s_waitcnt vmcnt(0)", "s_branch L_l_last" + tag)
    a.label("L_l_w4" + tag)
    a("s_waitcnt vmcnt(4)", "s_branch L_l_last" + tag)
    a.label("L_l_w32" + tag)
    a("s_waitcnt vmcnt(32)")
    a.label("L_l_last" + tag)
    a("s_barrier")
    stamp(a, 3, cfg, vt=(126, 127))
    a("s_endpgm")


def loader_plain(a, dft, cfg):
    tag = "D" if dft else "G"
    import io
    sub = Asm()
    loader_path(sub, dft, cfg)
    keep = []
    lines = sub.L
    first = next(i for i, x in enumerate(lines) if isinstance(x, str) and " lds" in x)
    j = first
    while not lines[j].startswith("s_mov_b32 s33"): j -= 1
    for x in lines[:j]: a(x)
    vm = VM(a)
    vXD, vWD = 8, 16
    kwstep = 128 if dft else 64 * 3456
    def stage(k):
        base = (k % 3) * STAGE
        if cfg.get("abl_nodma") and k >= 2:
            vm.op(f"buffer_load_dword v126, v{vLANE}, s[{S_X}:{S_X+3}], 0 offen", f"S{k}"); return
        a(f"s_mov_b32 s{sKX}, {k*128}", f"s_mov_b32 s{sKW}, {k*kwstep}", f"s_add_u32 m0, s{sM0W}, {base}")
        for i in range(4):
            if dft: t = f"buffer_load_dwordx4 v{vWD+i}, s[{S_WA}:{S_WA+3}], s{sKW} offen offset:{i*1024} lds"
            else:
                sr = S_WA if i < 2 else S_WB
                t = f"buffer_load_dwordx4 v{vWD+(i&1)}, s[{sr}:{sr+3}], s{sKW} offen offset:{i*1024} lds"
            vm.op(t, f"S{k}")
        for h in range(2):
            a(f"s_add_u32 m0, s{sM0X}, {base + h*4096}", "s_nop 0")
            for i in range(4 * h, 4 * h + 4):
                vm.op(f"buffer_load_dwordx4 v{vXD+i}, s[{S_X}:{S_X+3}], s{sKX} offen offset:{(i&3)*1024} lds", f"S{k}")
    stage(0); stage(1)
    for k in range(10):
        vm.wait(f"S{k}"); a("s_barrier")
        if k + 2 < 10: stage(k + 2)
    stamp(a, 3, cfg, vt=(126, 127))
    a("s_endpgm")


def emit_k1(name, cfg):
    a = Asm()
    a("s_cmp_ge_u32 s2, 256", "s_cbranch_scc1 L_k1_exit")
    a(f"s_load_dwordx2 s[4:5], s[0:1], 0", f"s_load_dwordx4 s[64:67], s[0:1], 32", f"s_load_dwordx2 s[6:7], s[0:1], 72",
      f"s_load_dwordx4 s[{sWR}:{sWR+3}], s[0:1], 8", f"s_load_dwordx2 s[{sWD}:{sWD+1}], s[0:1], 48",
      f"s_load_dwordx2 s[{sDBG}:{sDBG+1}], s[0:1], 64")
    a(f"v_lshrrev_b32 v{vT0}, 6, v0", f"v_and_b32 v{vLANE}, 63, v0", f"v_readfirstlane_b32 s{sWAVE}, v{vT0}",
      f"v_lshrrev_b32 v{vE8}, 3, v{vLANE}", f"v_and_b32 v{vC8}, 7, v{vLANE}")
    a(f"s_and_b32 s{sT0}, s2, 1", f"s_lshl_b32 s{sT0}, s{sT0}, 2", f"s_lshr_b32 s{sT1}, s2, 3", f"s_and_b32 s{sT2}, s{sT1}, 3",
      f"s_add_u32 s{sRB}, s{sT0}, s{sT2}",
      f"s_and_b32 s{sT0}, s2, 7", f"s_lshr_b32 s{sT0}, s{sT0}, 1", f"s_lshl_b32 s{sT0}, s{sT0}, 3", f"s_lshr_b32 s{sT1}, s{sT1}, 2",
      f"s_add_u32 s{sCB}, s{sT0}, s{sT1}")
    a("s_getpc_b64 s[68:69]")
    a("s_add_u32 s68, s68, ft_table@rel32@lo+4", "s_addc_u32 s69, s69, ft_table@rel32@hi+12")
    a("s_waitcnt lgkmcnt(0)")
    srd(a, S_X, 4, 2048 * 1280)
    srd(a, S_WS, 6, 0x1800000)
    a(f"s_mov_b32 s{sC0}, s66", f"s_mov_b32 s{sC1}, s67")
    srd(a, S_WB, 66, 640 * 3456 + 2048, sub=2048)
    a(f"s_cmp_ge_u32 s{sCB}, 27")
    a(f"s_cselect_b32 s{S_WA}, s68, s64", f"s_cselect_b32 s{S_WA+1}, s69, s65",
      f"s_mov_b32 s{S_WA+2}, {640*3456}", f"s_cselect_b32 s{S_WA+2}, {640*1280}, s{S_WA+2}", f"s_mov_b32 s{S_WA+3}, 0x00020000")
    stamp(a, 0, cfg)
    stamp(a, 14, cfg, clock=True)
    a(f"s_cmp_ge_u32 s{sWAVE}, 4", "s_cbranch_scc1 L_k1_load")
    a(f"s_cmp_ge_u32 s{sCB}, 27", "s_cbranch_scc1 L_k1_dft")
    mfma_path(a, False, cfg)
    a.label("L_k1_dft")
    mfma_path(a, True, cfg)
    a.label("L_k1_load")
    a(f"s_cmp_ge_u32 s{sCB}, 27", "s_cbranch_scc1 L_k1_load_dft")
    LP = loader_plain if cfg.get("abl_noside") else loader_path
    LP(a, False, cfg)
    a.label("L_k1_load_dft")
    LP(a, True, cfg)
    a.label("L_k1_exit")
    a("s_endpgm")
    return a.finish(), a.nops
```

```python
from asmlib import *
from layout import *
from k1 import srd, interleave

ROW = 4160
KF_LDS = 8 * ROW

S_WS, S_TB = 8, 12
sWAVE, sG, sGIN, sCOL, sRE, sIM, sMASK = 28, 29, 30, 31, 32, 33, 34
sT0, sT1, sT2, sT3 = 40, 41, 42, 43
vLANE, vE8, vC8, vT0, vT1, vT2, vT3 = 1, 2, 3, 4, 5, 6, 7
vDA = 8
vW = 16
vTM = 48
ACC, OP, FR, FI, NFI, TW, CC = 64, 128, 160, 168, 176, 184, 248

def acc(sg, c): return ACC + 32 * sg + 16 * c
def op(sg, c, t): return OP + 16 * sg + 8 * c + 4 * t
def R(b, n): return f"v[{b}:{b+n-1}]"

MF = "v_mfma_f32_32x32x16_bf16"

def stage_mfmas(data_is_a, conj):
    L = []
    for sg in range(2):
        for c in range(2):
            if c == 0: terms = [(FR, 0), (FI if conj else NFI, 1)]
            else: terms = [(NFI if conj else FI, 0), (FR, 1)]
            first = True
            for cst, dc in terms:
                for t in range(2):
                    d = R(op(sg, dc, t), 4); k = R(cst + 4 * t, 4)
                    A_, B_ = (d, k) if data_is_a else (k, d)
                    D = R(acc(sg, c), 16)
                    L.append(f"{MF} {D}, {A_}, {B_}, {'0' if first else D}")
                    first = False
    return L

BC_LO = "op_sel_hi:[1,0]"
def pkmul_b(d, x, hi): return f"v_pk_mul_f32 {R(d,2)}, {R(x,2)}, {R(CC,2)} " + ("op_sel:[0,1] op_sel_hi:[1,1]" if hi else "op_sel_hi:[1,0]")
def pkfma_b(d, x, hi, s2, neg):
    m = "op_sel:[0,1,0] op_sel_hi:[1,1,1]" if hi else "op_sel_hi:[1,0,1]"
    return f"v_pk_fma_f32 {R(d,2)}, {R(x,2)}, {R(CC,2)}, {R(s2,2)} {m}" + (" neg_lo:[0,0,1] neg_hi:[0,0,1]" if neg else "")

def twiddle(a, conj):
    for p in range(8):
        r = 2 * p
        e0r, e0i, e1r, e1i = acc(0, 0) + r, acc(0, 1) + r, acc(1, 0) + r, acc(1, 1) + r
        t1, t2, mr, mi = vTM + 8 * (p & 1), vTM + 2 + 8 * (p & 1), vTM + 4 + 8 * (p & 1), vTM + 6 + 8 * (p & 1)
        a(pkmul_b(t1, e1i, True), pkmul_b(t2, e1r, True))
        a(pkfma_b(mr, e1r, False, t1, not conj), pkfma_b(mi, e1i, False, t2, conj))
        a(f"v_pk_add_f32 {R(e1r,2)}, {R(e0r,2)}, {R(mr,2)} neg_lo:[0,1] neg_hi:[0,1]",
          f"v_pk_add_f32 {R(e1i,2)}, {R(e0i,2)}, {R(mi,2)} neg_lo:[0,1] neg_hi:[0,1]",
          f"v_pk_add_f32 {R(e0r,2)}, {R(e0r,2)}, {R(mr,2)}", f"v_pk_add_f32 {R(e0i,2)}, {R(e0i,2)}, {R(mi,2)}")
        for sg in range(2):
            ur, ui = acc(sg, 0) + r, acc(sg, 1) + r
            tr, ti = TW + 32 * sg + r, TW + 32 * sg + 16 + r
            a(f"v_pk_mul_f32 {R(t1,2)}, {R(ui,2)}, {R(ti,2)}", f"v_pk_mul_f32 {R(t2,2)}, {R(ur,2)}, {R(ti,2)}")
            ng = " neg_lo:[0,0,1] neg_hi:[0,0,1]"
            a(f"v_pk_fma_f32 {R(ur,2)}, {R(ur,2)}, {R(tr,2)}, {R(t1,2)}" + ("" if conj else ng),
              f"v_pk_fma_f32 {R(ui,2)}, {R(ui,2)}, {R(tr,2)}, {R(t2,2)}" + (ng if conj else ""))
            a(f"v_cvt_pk_bf16_f32 v{op(sg,0,r>>3)+((r&7)>>1)}, v{ur}, v{ur+1}", f"v_cvt_pk_bf16_f32 v{op(sg,1,r>>3)+((r&7)>>1)}, v{ui}, v{ui+1}")

def wstage(a):
    for sg in range(2):
        for p in range(8):
            r = 2 * p
            xr, xi = acc(sg, 0) + r, acc(sg, 1) + r
            w = vW + 16 * sg + r
            wr, wi, t1, t2 = vTM + 8 * (p & 1), vTM + 2 + 8 * (p & 1), vTM + 4 + 8 * (p & 1), vTM + 6 + 8 * (p & 1)
            a(f"v_lshlrev_b32 v{wr}, 16, v{w}", f"v_lshlrev_b32 v{wr+1}, 16, v{w+1}",
              f"v_and_b32 v{wi}, 0xffff0000, v{w}", f"v_and_b32 v{wi+1}, 0xffff0000, v{w+1}")
            a(f"v_pk_mul_f32 {R(t1,2)}, {R(xi,2)}, {R(wi,2)}", f"v_pk_mul_f32 {R(t2,2)}, {R(xr,2)}, {R(wi,2)}",
              f"v_pk_fma_f32 {R(xr,2)}, {R(xr,2)}, {R(wr,2)}, {R(t1,2)} neg_lo:[0,0,1] neg_hi:[0,0,1]",
              f"v_pk_fma_f32 {R(xi,2)}, {R(xi,2)}, {R(wr,2)}, {R(t2,2)}")
            a(f"v_cvt_pk_bf16_f32 v{op(sg,0,r>>3)+((r&7)>>1)}, v{xr}, v{xr+1}", f"v_cvt_pk_bf16_f32 v{op(sg,1,r>>3)+((r&7)>>1)}, v{xi}, v{xi+1}")

def kf_body(a, cfg, wg_sreg, finish):
    a(f"s_load_dwordx2 s[6:7], s[0:1], 72")
    a(f"v_lshrrev_b32 v{vT0}, 6, v0", f"v_and_b32 v{vLANE}, 63, v0", f"v_readfirstlane_b32 s{sWAVE}, v{vT0}",
      f"v_lshrrev_b32 v{vE8}, 3, v{vLANE}", f"v_and_b32 v{vC8}, 7, v{vLANE}", f"s_mov_b32 s{sG}, s{wg_sreg}")
    a("s_getpc_b64 s[4:5]", "s_add_u32 s4, s4, fft_table@rel32@lo+4", "s_addc_u32 s5, s5, fft_table@rel32@hi+12")
    srd(a, S_TB, 4, 23040)
    a(f"s_cmp_eq_u32 s{sG}, 80", f"s_cselect_b32 s{sGIN}, 0, s{sG}", f"s_cselect_b32 s{sT0}, 1, 0")
    a(f"s_lshl_b32 s{sRE}, s{sWAVE}, 1", f"s_add_u32 s{sIM}, s{sRE}, 1", f"s_lshl_b32 s{sCOL}, s{sGIN}, 2", f"s_add_u32 s{sCOL}, s{sCOL}, s{sWAVE}")
    a(f"s_cmp_eq_u32 s{sCOL}, 0", f"s_cselect_b32 s{sMASK}, 0, -1", f"s_cselect_b32 s{sT1}, s{sT0}, 0")
    a(f"s_cmp_eq_u32 s{sT1}, 1", f"s_cselect_b32 s{sRE}, 1, s{sRE}", f"s_cselect_b32 s{sCOL}, 320, s{sCOL}")
    a(f"s_lshl_b32 s{sT0}, s{sWAVE}, 6", f"v_add_u32 v{vT0}, s{sT0}, v{vE8}", f"v_mul_u32_u24 v{vT0}, {640*16}, v{vT0}",
      f"s_lshl_b32 s{sT0}, s{sGIN}, 7", f"s_add_u32 s{sT0}, s{sT0}, {WS_P2}", f"v_add_u32 v{vT0}, s{sT0}, v{vT0}",
      f"v_lshrrev_b32 v{vT1}, 1, v{vE8}", f"v_xor_b32 v{vT1}, v{vT1}, v{vC8}", f"v_xor_b32 v{vT2}, 4, v{vT1}",
      f"v_lshlrev_b32 v{vT1}, 4, v{vT1}", f"v_lshlrev_b32 v{vT2}, 4, v{vT2}")
    for i in range(8):
        a(f"v_add_u32 v{vDA+i}, v{vT0}, v{vT2 if i & 1 else vT1}")
        c = i * 8 * 640 * 16 - (i & 3) * 1024
        if c: a(f"v_add_u32 v{vDA+i}, {c}, v{vDA+i}")
    a("s_waitcnt lgkmcnt(0)")
    srd(a, S_WS, 6, 0x1800000)
    a(f"s_lshl_b32 s{sT0}, s{sWAVE}, 13")
    for h in range(2):
        a(f"s_add_u32 m0, s{sT0}, {h*4096}", "s_nop 0")
        for i in range(4 * h, 4 * h + 4):
            a(f"buffer_load_dwordx4 v{vDA+i}, s[{S_WS}:{S_WS+3}], 0 offen offset:{(i&3)*1024} lds")
    a(f"v_lshlrev_b32 v{vT0}, 4, v{vLANE}", f"v_lshlrev_b32 v{vT1}, 3, v{vLANE}")
    for i in range(6):
        a(f"s_mov_b32 s{sT1}, {i*1024}", f"buffer_load_dwordx4 {R(FR+4*i,4)}, v{vT0}, s[{S_TB}:{S_TB+3}], s{sT1} offen")
    a(f"s_mov_b32 s{sT1}, {6144+16384}", f"buffer_load_dwordx2 {R(CC,2)}, v{vT1}, s[{S_TB}:{S_TB+3}], s{sT1} offen")
    for i in range(16):
        a(f"s_mov_b32 s{sT1}, {6144+i*1024}", f"buffer_load_dwordx4 {R(TW+4*i,4)}, v{vT0}, s[{S_TB}:{S_TB+3}], s{sT1} offen")
    a(f"s_lshl_b32 s{sT2}, s{sCOL}, 13", f"s_add_u32 s{sT2}, s{sT2}, {WS_WP}")
    for i in range(8):
        a(f"buffer_load_dwordx4 {R(vW+4*i,4)}, v{vT0}, s[{S_WS}:{S_WS+3}], s{sT2} offen", f"s_add_u32 s{sT2}, s{sT2}, 1024")
    a(f"v_lshrrev_b32 v{vT1}, 1, v{vLANE}", f"v_and_b32 v{vT1}, 7, v{vT1}", f"v_lshlrev_b32 v{vT2}, 7, v{vLANE}",
      f"v_xor_b32 v{vT3}, s{sRE}, v{vT1}", f"v_lshlrev_b32 v{vT3}, 4, v{vT3}", f"v_add_u32 v{vDA}, v{vT2}, v{vT3}",
      f"v_xor_b32 v{vT3}, s{sIM}, v{vT1}", f"v_lshlrev_b32 v{vT3}, 4, v{vT3}", f"v_add_u32 v{vDA+1}, v{vT2}, v{vT3}")
    a("s_waitcnt vmcnt(31)", "s_barrier")
    for sg in range(2):
        for c in range(2):
            for t in range(2):
                a(f"ds_read_b128 {R(op(sg,c,t),4)}, v{vDA+c} offset:{(2*sg+t)*8192}")
    a("s_waitcnt lgkmcnt(0)")
    for sg in range(2):
        for r in range(8): a(f"v_and_b32 v{op(sg,1,0)+r}, s{sMASK}, v{op(sg,1,0)+r}")
    a("s_barrier")
    a("s_waitcnt vmcnt(24)")
    for m in stage_mfmas(True, False): a(m)
    a("s_waitcnt vmcnt(8)")
    twiddle(a, False)
    for m in stage_mfmas(False, False): a(m)
    a("s_waitcnt vmcnt(0)")
    wstage(a)
    for m in stage_mfmas(True, True): a(m)
    twiddle(a, True)
    for m in stage_mfmas(False, True): a(m)
    a(f"s_lshl_b32 s{sT0}, s{sWAVE}, 1", f"s_mul_i32 s{sT0}, s{sT0}, {ROW}", f"v_lshlrev_b32 v{vT0}, 4, v{vLANE}", f"v_add_u32 v{vT0}, s{sT0}, v{vT0}")
    for be in range(2):
        for c in range(2):
            for t in range(2):
                O = op(be, c, t)
                for p in range(4):
                    a(f"v_cvt_pk_bf16_f32 v{O+p}, v{acc(be,c)+8*t+2*p}, v{acc(be,c)+8*t+2*p+1}")
                a(f"ds_write_b128 v{vT0}, {R(O,4)} offset:{c*ROW + (2*be+t)*1024}")
    a("s_waitcnt lgkmcnt(0)", "s_barrier")
    a(f"v_and_b32 v{vT0}, 15, v{vLANE}", f"v_lshrrev_b32 v{vT0}, 2, v{vT0}", f"v_mul_u32_u24 v{vT0}, {ROW}, v{vT0}",
      f"v_lshrrev_b32 v{vT1}, 4, v{vLANE}", f"v_lshlrev_b32 v{vT2}, 5, v{vT1}", f"v_add_u32 v{vT0}, v{vT0}, v{vT2}",
      f"v_and_b32 v{vT2}, 3, v{vLANE}", f"v_lshlrev_b32 v{vT2}, 3, v{vT2}", f"v_add_u32 v{vT0}, v{vT0}, v{vT2}",
      f"s_lshl_b32 s{sT0}, s{sWAVE}, 10", f"v_add_u32 v{vT0}, s{sT0}, v{vT0}")
    for it in range(8):
        for rho in range(2):
            a(f"ds_read_b64_tr_b16 {R(ACC+4*it+2*rho,2)}, v{vT0} offset:{it*128 + rho*4*ROW}")
    a(f"v_mul_u32_u24 v{vT1}, {NKB*1024}, v{vT1}", f"v_and_b32 v{vT2}, 15, v{vLANE}", f"v_lshlrev_b32 v{vT2}, 4, v{vT2}",
      f"v_add_u32 v{vT1}, v{vT1}, v{vT2}",
      f"s_mul_i32 s{sT0}, s{sWAVE}, {32*NKB*1024}", f"s_lshr_b32 s{sT1}, s{sG}, 2", f"s_add_u32 s{sT1}, s{sT1}, {NKB_H}", f"s_lshl_b32 s{sT1}, s{sT1}, 10",
      f"s_add_u32 s{sT0}, s{sT0}, s{sT1}", f"s_and_b32 s{sT1}, s{sG}, 3", f"s_lshl_b32 s{sT1}, s{sT1}, 8", f"s_add_u32 s{sT0}, s{sT0}, s{sT1}",
      f"s_add_u32 s{sT0}, s{sT0}, {WS_AF}", "s_waitcnt lgkmcnt(0)")
    st = cfg.get("kf_store", "")
    for it in range(8):
        a(f"buffer_store_dwordx4 {R(ACC+4*it,4)}, v{vT1}, s[{S_WS}:{S_WS+3}], s{sT0} offen {st}", f"s_add_u32 s{sT0}, s{sT0}, {4*NKB*1024}")
    finish(a)

def emit_kf(name, cfg):
    a = Asm()
    a("s_cmp_ge_u32 s2, 81", "s_cbranch_scc1 L_kf_exit")
    kf_body(a, cfg, 2, lambda a: None)
    a.label("L_kf_exit")
    a("s_endpgm")
    return a.finish(), a.nops
```

```python
from asmlib import *
from layout import *
from k1 import srd

KG_LDS = 4 * 3 * 5 * 1024
S_WS, S_GF, S_X, S_OUT = 8, 12, 16, 20
sWAVE, sRT, sCT, sKA, sKB = 28, 29, 30, 31, 32
sT0, sT1, sT2 = 40, 41, 42
vLANE, vT0, vT1, vT2 = 1, 2, 3, 4
vA, vBH, vBQ, vL16 = 5, 9, 14, 19
vXR = 20
DEPTH = 4
vFR = 32
vACC = vFR + DEPTH * 36
MF = "v_mfma_f32_16x16x32_bf16"

def R(b, n): return f"v[{b}:{b+n-1}]"

def steps_for(nh, nq): return [("h", i) for i in range(nh)] + [("q", i) for i in range(nq)]

def kg_variant(a, cfg, nh, nq, tag, wait_q):
    steps = steps_for(nh, nq)
    n = len(steps)
    issued = 0
    def loads(k, which):
        kind, i = steps[k]
        F = vFR + (k % DEPTH) * 36
        L = []
        if which == "A":
            for rb in range(4):
                va = vA + rb
                L.append(f"buffer_load_dwordx4 {R(F+4*rb,4)}, v{va}, s[{S_WS}:{S_WS+3}], s{sKA} offen {cfg.get('kg_aload','')}")
        else:
            for nb in range(5):
                if kind == "h": L.append(f"buffer_load_dwordx4 {R(F+16+4*nb,4)}, v{vBH+nb}, s[{S_WS}:{S_WS+3}], s{sKB} offen")
                else: L.append(f"buffer_load_dwordx4 {R(F+16+4*nb,4)}, v{vBQ+nb}, s[{S_GF}:{S_GF+3}], s{sKB} offen")
        return L
    def pre(k):
        kind, i = steps[k]
        if kind == "h":
            if i == 0: return [f"s_mov_b32 s{sKA}, s{sT0}", f"s_mov_b32 s{sKB}, s{sT0}"]
            return [f"s_add_u32 s{sKA}, s{sKA}, 1024", f"s_add_u32 s{sKB}, s{sKB}, 1024"]
        if i == 0:
            L = []
            if wait_q: L += wait_q
            return L + [f"s_add_u32 s{sKA}, s{sT1}, {NKB_H*1024}", f"s_mov_b32 s{sKB}, s{sT1}"]
        return [f"s_add_u32 s{sKA}, s{sKA}, 1024", f"s_add_u32 s{sKB}, s{sKB}, 1024"]
    def last_q_fix(k):
        return []
    for k in range(min(DEPTH, n)):
        for x in pre(k): a(x)
        for x in loads(k, "B") + loads(k, "A"): a(x)
    for k in range(n):
        rem = min(DEPTH - 1, n - 1 - k)
        a(f"s_waitcnt vmcnt({9*rem})")
        F = vFR + (k % DEPTH) * 36
        nxt = k + DEPTH
        fill = []
        if nxt < n:
            fill = pre(nxt)
            lb, la = loads(nxt, "B"), loads(nxt, "A")
        else: lb, la = [], []
        for x in fill: a(x)
        for nb in range(5):
            for rb in range(4):
                T = vACC + 4 * (nb * 4 + rb)
                c = "0" if k == 0 else R(T, 4)
                a(f"{MF} {R(T,4)}, {R(F+16+4*nb,4)}, {R(F+4*rb,4)}, {c}")
            if lb: a(lb[nb])
        for x in la: a(x)

def kg_body(a, cfg, id_sreg, wait_q=None):
    a(f"s_load_dwordx2 s[4:5], s[0:1], 0", f"s_load_dwordx2 s[6:7], s[0:1], 72", f"s_load_dwordx2 s[24:25], s[0:1], 56")
    a(f"v_lshrrev_b32 v{vT0}, 6, v0", f"v_and_b32 v{vLANE}, 63, v0", f"v_readfirstlane_b32 s{sWAVE}, v{vT0}")
    a(f"s_and_b32 s{sT0}, s{id_sreg}, 7", f"s_lshr_b32 s{sT1}, s{id_sreg}, 3",
      f"s_lshr_b32 s{sRT}, s{sT0}, 1", f"s_lshl_b32 s{sRT}, s{sRT}, 3", f"s_and_b32 s{sT2}, s{sT1}, 7", f"s_add_u32 s{sRT}, s{sRT}, s{sT2}",
      f"s_and_b32 s{sCT}, s{sT0}, 1", f"s_lshl_b32 s{sCT}, s{sCT}, 2", f"s_lshr_b32 s{sT2}, s{sT1}, 3", f"s_add_u32 s{sCT}, s{sCT}, s{sT2}")
    a("s_getpc_b64 s[26:27]", "s_add_u32 s26, s26, gf_table@rel32@lo+4", "s_addc_u32 s27, s27, gf_table@rel32@hi+12")
    srd(a, S_GF, 26, 40 * NKB_Q * 1024)
    a(f"v_lshlrev_b32 v{vL16}, 4, v{vLANE}")
    a(f"s_mul_i32 s{sT0}, s{sRT}, {4*NKB*1024}", f"s_add_u32 s{sT0}, s{sT0}, {WS_AF}", f"v_add_u32 v{vA}, s{sT0}, v{vL16}")
    for rb in range(1, 4): a(f"v_add_u32 v{vA+rb}, {NKB*1024}, v{vA+rb-1}")
    a(f"s_mul_i32 s{sT0}, s{sCT}, {5*NKB_H*1024}", f"s_add_u32 s{sT0}, s{sT0}, {WS_WDF}", f"v_add_u32 v{vBH}, s{sT0}, v{vL16}")
    for nb in range(1, 5): a(f"v_add_u32 v{vBH+nb}, {NKB_H*1024}, v{vBH+nb-1}")
    a(f"s_mul_i32 s{sT0}, s{sCT}, {5*NKB_Q*1024}", f"v_add_u32 v{vBQ}, s{sT0}, v{vL16}")
    for nb in range(1, 5): a(f"v_add_u32 v{vBQ+nb}, {NKB_Q*1024}, v{vBQ+nb-1}")
    a("s_waitcnt lgkmcnt(0)")
    srd(a, S_WS, 6, 0x1800000)
    srd(a, S_X, 4, 2048 * 1280)
    srd(a, S_OUT, 24, 2048 * 1280)
    a(f"s_lshl_b32 s{sT0}, s{sRT}, 6", f"s_lshl_b32 s{sT1}, s{sWAVE}, 4", f"s_add_u32 s{sT0}, s{sT0}, s{sT1}",
      f"v_and_b32 v{vT0}, 15, v{vLANE}", f"v_add_u32 v{vT0}, s{sT0}, v{vT0}")
    a(f"v_bfe_u32 v{vT1}, v{vT0}, 9, 1", f"v_lshlrev_b32 v{vT1}, 4, v{vT1}",
      f"v_bfe_u32 v{vT2}, v{vT0}, 2, 1", f"v_lshlrev_b32 v{vT2}, 3, v{vT2}", f"v_add_u32 v{vT1}, v{vT1}, v{vT2}",
      f"v_bfe_u32 v{vT2}, v{vT0}, 8, 1", f"v_lshlrev_b32 v{vT2}, 2, v{vT2}", f"v_add_u32 v{vT1}, v{vT1}, v{vT2}",
      f"v_and_b32 v{vT2}, 3, v{vT0}", f"v_add_u32 v{vT1}, v{vT1}, v{vT2}", f"v_lshlrev_b32 v{vT1}, 6, v{vT1}",
      f"v_bfe_u32 v{vT2}, v{vT0}, 10, 1", f"v_lshlrev_b32 v{vT2}, 5, v{vT2}", f"v_add_u32 v{vT1}, v{vT1}, v{vT2}",
      f"v_bfe_u32 v{vT2}, v{vT0}, 3, 5", f"v_add_u32 v{vT1}, v{vT1}, v{vT2}", f"v_mul_u32_u24 v{vT1}, 1280, v{vT1}",
      f"s_mul_i32 s{sT0}, s{sCT}, 160", f"v_lshrrev_b32 v{vT2}, 4, v{vLANE}", f"v_lshlrev_b32 v{vT2}, 3, v{vT2}",
      f"v_add_u32 v{vT1}, v{vT1}, v{vT2}", f"v_add_u32 v30, s{sT0}, v{vT1}")
    for nb in range(5):
        a(f"buffer_load_dwordx2 {R(vXR+2*nb,2)}, v30, s[{S_X}:{S_X+3}], 0 offen offset:{nb*32}")
    a(f"s_mul_i32 s{sT0}, s{sWAVE}, {14*1024}", f"s_mul_i32 s{sT1}, s{sWAVE}, {5*1024}")
    a(f"s_cmp_eq_u32 s{sWAVE}, 3", "s_cbranch_scc1 L_kg_v3")
    kg_variant(a, cfg, 14, 5, "a", wait_q)
    a("s_branch L_kg_red")
    a.label("L_kg_v3")
    kg_variant_last(a, cfg, wait_q)
    a.label("L_kg_red")
    for o in range(4):
        a(f"s_cmp_eq_u32 s{sWAVE}, {o}", f"s_cbranch_scc1 L_kg_skip{o}")
        a(f"s_cmp_gt_u32 s{sWAVE}, {o}", f"s_cselect_b32 s{sT0}, 1, 0", f"s_sub_u32 s{sT0}, s{sWAVE}, s{sT0}", f"s_add_u32 s{sT0}, s{sT0}, {o*3}",
          f"s_mul_i32 s{sT0}, s{sT0}, 5120", f"v_add_u32 v{vT0}, s{sT0}, v{vL16}")
        for nb in range(5):
            T = vACC + 4 * (nb * 4 + o)
            a(f"ds_write_b128 v{vT0}, {R(T,4)} offset:{nb*1024}")
        a.label(f"L_kg_skip{o}")
    a("s_waitcnt lgkmcnt(0)", "s_barrier")
    a(f"s_mul_i32 s{sT0}, s{sWAVE}, {3*5120}", f"v_add_u32 v{vT0}, s{sT0}, v{vL16}")
    for sidx in range(3):
        for nb in range(5):
            a(f"ds_read_b128 {R(vFR+20*sidx+4*nb,4)}, v{vT0} offset:{sidx*5120+nb*1024}")
    for o in range(4):
        a(f"s_cmp_eq_u32 s{sWAVE}, {o}", f"s_cbranch_scc0 L_kg_own{o}")
        for nb in range(5):
            T = vACC + 4 * (nb * 4 + o)
            for r in range(4): a(f"v_mov_b32 v{vFR+60+4*nb+r}, v{T+r}")
        a.label(f"L_kg_own{o}")
    a("s_waitcnt lgkmcnt(0)")
    for nb in range(5):
        O = vFR + 60 + 4 * nb
        for sidx in range(3):
            for p in range(2):
                a(f"v_pk_add_f32 {R(O+2*p,2)}, {R(O+2*p,2)}, {R(vFR+20*sidx+4*nb+2*p,2)}")
        for p in range(2):
            x = vXR + 2 * nb + p
            a(f"v_lshlrev_b32 v{vT0}, 16, v{x}", f"v_and_b32 v{vT1}, 0xffff0000, v{x}",
              f"v_add_f32 v{O+2*p}, v{O+2*p}, v{vT0}", f"v_add_f32 v{O+2*p+1}, v{O+2*p+1}, v{vT1}",
              f"v_cvt_pk_bf16_f32 v{x}, v{O+2*p}, v{O+2*p+1}")
        a(f"buffer_store_dwordx2 {R(vXR+2*nb,2)}, v30, s[{S_OUT}:{S_OUT+3}], 0 offen offset:{nb*32}")

def kg_variant_last(a, cfg, wait_q):
    sub = Asm()
    kg_variant(sub, cfg, 12, 6, "b", wait_q)
    lines = sub.L
    idx = [i for i, x in enumerate(lines) if x.startswith("buffer_load_dwordx4") and any(f", v{vA+rb}, " in x for rb in range(4))]
    last4 = idx[-4:]
    first = last4[0]
    fix = [f"v_cmp_gt_u32 vcc, 16, v{vLANE}"] + [f"v_cndmask_b32 v{vA+rb}, v31, v{vA+rb}, vcc" for rb in range(4)]
    for i, x in enumerate(lines):
        if i == first:
            a("v_mov_b32 v31, 0x7f000000")
            for y in fix: a(y)
        a(x)

def emit_kg(name, cfg):
    a = Asm()
    a("s_cmp_ge_u32 s2, 256", "s_cbranch_scc1 L_kg_exit")
    kg_body(a, cfg, 2)
    a.label("L_kg_exit")
    a("s_endpgm")
    return a.finish(), a.nops
```

```python
import numpy as np

S, D, FF = 2048, 640, 1728
NKB_H, NKB_Q = 54, 21
NKB = NKB_H + NKB_Q

WS_AF   = 0x0000000
WS_P2   = 0x0A00000
WS_WP   = 0x0D00000
WS_WDF  = 0x1000000
WS_STAT = 0x1300000
WS_CSP  = 0x1310000
WS_CNT  = 0x1390000
SZ_AF = 128 * NKB * 1024
SZ_P2 = 256 * 640 * 16
SZ_WP = 321 * 8192
SZ_WDF = 40 * NKB_H * 1024
SZ_STAT = 2048 * 16
SZ_CSP = 27 * 16 * 64 * 16

def amap(t, hh, e):
    return 16 * t + 8 * (e >> 2) + 4 * hh + (e & 3)

def pos2s(pos):
    pos = np.asarray(pos)
    beta = pos >> 10; t = (pos >> 9) & 1; hh = (pos >> 8) & 1; b = (pos >> 3) & 31; e = pos & 7
    return 64 * amap(t, hh, e) + 32 * beta + b

def swap23(r):
    return (r & ~12) | ((r & 4) << 1) | ((r & 8) >> 1)

def to_bf16(f):
    u = np.ascontiguousarray(f, dtype=np.float32).view(np.uint32)
    return ((u + 0x7FFF + ((u >> 16) & 1)) >> 16).astype(np.uint16)

def from_bf16(u):
    return (np.asarray(u).astype(np.uint32) << 16).view(np.float32)

def ft_matrix():
    d = np.arange(640)
    M = np.zeros((640, 640))
    M[0] = 1.0
    M[1] = np.cos(np.pi * d)
    for p in range(1, 320):
        ang = 2 * np.pi * ((p * d) % 640) / 640
        M[2 * p] = np.cos(ang)
        M[2 * p + 1] = -np.sin(ang)
    return M

def g_matrix():
    M = ft_matrix().copy()
    sc = np.full(640, 2.0 / (640 * 2048))
    sc[0] = sc[1] = 1.0 / (640 * 2048)
    return M * sc[:, None]

def h_kidx(g, e):
    return 16 * (e >> 2) + 4 * g + (e & 3)

def af_h_expected(h):
    l = np.arange(64)[:, None]; e = np.arange(8)[None, :]
    g = l >> 4; r = l & 15
    k = h_kidx(g, e)
    out = np.zeros((128, 54, 64, 8), np.uint16)
    for rb in range(128):
        rows = h[rb * 16 + r[:, 0]]
        for kb in range(54):
            out[rb, kb] = np.take_along_axis(rows, kb * 32 + k, axis=1)
    return out

def wdf_expected(wd):
    l = np.arange(64)[:, None]; e = np.arange(8)[None, :]
    g = l >> 4; n = l & 15
    k = h_kidx(g, e)
    out = np.zeros((40, 54, 64, 8), np.uint16)
    for nb in range(40):
        for kb in range(54):
            out[nb, kb] = wd[kb * 32 + k, nb * 16 + n]
    return out

def gq_matrix():
    G = g_matrix()
    G[np.abs(G) < 1e-14] = 0.0
    M = np.zeros((672, 640))
    M[:640] = G
    M[1] = 0.0
    M[640] = G[1]
    return M

def gf_table():
    G = to_bf16(gq_matrix())
    l = np.arange(64)[:, None]; e = np.arange(8)[None, :]
    g = l >> 4; n = l & 15
    out = np.zeros((40, 21, 64, 8), np.uint16)
    for nb in range(40):
        for kb in range(21):
            out[nb, kb] = G[kb * 32 + 8 * g + e, nb * 16 + n]
    return out

def wp_kidx():
    i = np.arange(2048)
    ii = i & 3; lane = (i >> 2) & 63; lam = i >> 8
    pi = lam >> 2; j = lam & 3
    return (lane & 31) + 32 * pi + 64 * (8 * j + 4 * (lane >> 5) + ii)

def wp_expected(wr, wi):
    k = wp_kidx()
    out = np.zeros((321, 2048), np.uint32)
    for m in range(321):
        out[m] = wr[k, m].astype(np.uint32) | (wi[k, m].astype(np.uint32) << 16)
    return out

def col_rows(c):
    if c == 0: return 0, None, 0
    if c == 320: return 1, None, 320
    return 2 * c, 2 * c + 1, c

def fft_f_frags():
    l = np.arange(64)[:, None]; e = np.arange(8)[None, :]
    out = np.zeros((6, 64, 8), np.uint16)
    for t in range(2):
        a = amap(t, l >> 5, e); q = l & 31
        ang = 2 * np.pi * ((a * q) % 32) / 32
        out[0 + t] = to_bf16(np.cos(ang)); out[2 + t] = to_bf16(-np.sin(ang)); out[4 + t] = to_bf16(np.sin(ang))
    return out

def fft_tw():
    l = np.arange(64)
    ell = l & 31; hh = l >> 5
    tr = np.zeros((2, 16, 64), np.float32); ti = np.zeros((2, 16, 64), np.float32)
    for sg in range(2):
        for r in range(16):
            rho = 8 * (r >> 2) + 4 * hh + (r & 3)
            ang = 2 * np.pi * ((rho * (ell + 32 * sg)) % 2048) / 2048
            tr[sg, r] = np.cos(ang); ti[sg, r] = -np.sin(ang)
    return tr, ti

def fft_c():
    l = np.arange(64); ell = l & 31
    ang = 2 * np.pi * ell / 64
    return np.cos(ang).astype(np.float32), (-np.sin(ang)).astype(np.float32)
```

```python
from layout import *

def _cos_tab(scale):
    i = np.arange(640)
    c = np.cos(2 * np.pi * i / 640)
    c[np.abs(c) < 1e-9] = 0.0
    return to_bf16(c * scale)

def hexwords(arr_u32, per=8):
    arr = np.asarray(arr_u32, dtype=np.uint32).ravel()
    out = []
    for i in range(0, len(arr), per):
        out.append(".long " + ",".join(f"{int(x):#x}" for x in arr[i:i + per]))
    return "\n".join(out)

def ft_table_asm():
    T = _cos_tab(1.0)
    L = [f".set CT{i}, {int(T[i])}" for i in range(640)]
    L.append(r"""
.altmacro
.macro ft_e a0, a1, a2, a3, a4, a5, a6, a7
.long (CT\a0)|(CT\a1<<16), (CT\a2)|(CT\a3<<16), (CT\a4)|(CT\a5<<16), (CT\a6)|(CT\a7<<16)
.endm
.macro ft_row p, ph
.set ft_x, \ph
.rept 80
ft_e %(ft_x%640), %((ft_x+\p)%640), %((ft_x+2*\p)%640), %((ft_x+3*\p)%640), %((ft_x+4*\p)%640), %((ft_x+5*\p)%640), %((ft_x+6*\p)%640), %((ft_x+7*\p)%640)
.set ft_x, (ft_x+8*\p)%640
.endr
.endm
.p2align 8
.type ft_table,@object
ft_table:
ft_row 0, 0
ft_row 320, 0
.set ft_p, 1
.rept 319
ft_row %ft_p, 0
ft_row %ft_p, 160
.set ft_p, ft_p+1
.endr
.size ft_table, 819200
.noaltmacro
""")
    return "\n".join(L)

def gf_table_asm():
    T = _cos_tab(2.0 / (640 * 2048))
    H = _cos_tab(1.0 / (640 * 2048))
    L = [f".set CG{i}, {int(T[i])}" for i in range(640)]
    L.append(f".set CH0, {int(H[0])}\n.set CH320, {int(H[320])}")
    L.append(r"""
.altmacro
.macro gf_e a0, a1, a2, a3, a4, a5, a6, a7
.long (CG\a0)|(CG\a1<<16), (CG\a2)|(CG\a3<<16), (CG\a4)|(CG\a5<<16), (CG\a6)|(CG\a7<<16)
.endm
.macro gf_e0 a2, a3, a4, a5, a6, a7
.long (CH0), (CG\a2)|(CG\a3<<16), (CG\a4)|(CG\a5<<16), (CG\a6)|(CG\a7<<16)
.endm
.macro gf_e80 b0
.long (CH\b0), 0, 0, 0
.endm
.macro gf_grp p, d0
.set gf_d, \d0
.rept 16
.if \p == 0
gf_e0 %(gf_d%640), %((gf_d+160)%640), %((2*gf_d)%640), %((2*gf_d+160)%640), %((3*gf_d)%640), %((3*gf_d+160)%640)
.elseif \p == 320
gf_e80 %((320*gf_d)%640)
.elseif \p > 320
.long 0, 0, 0, 0
.else
gf_e %((\p*gf_d)%640), %((\p*gf_d+160)%640), %(((\p+1)*gf_d)%640), %(((\p+1)*gf_d+160)%640), %(((\p+2)*gf_d)%640), %(((\p+2)*gf_d+160)%640), %(((\p+3)*gf_d)%640), %(((\p+3)*gf_d+160)%640)
.endif
.set gf_d, gf_d+1
.endr
.endm
.p2align 8
.type gf_table,@object
gf_table:
.set gf_n, 0
.rept 40
.set gf_p, 0
.rept 84
gf_grp %gf_p, %gf_n
.set gf_p, gf_p+4
.endr
.set gf_n, gf_n+16
.endr
.size gf_table, 860160
.noaltmacro
""")
    return "\n".join(L)

def fft_table_asm():
    F = fft_f_frags().reshape(6, 64, 4, 2).astype(np.uint32)
    Fw = F[..., 0] | (F[..., 1] << 16)
    tr, ti = fft_tw()
    T = np.zeros((64, 64), np.float32)
    for sg in range(2):
        T[32 * sg:32 * sg + 16] = tr[sg]; T[32 * sg + 16:32 * sg + 32] = ti[sg]
    Tw = T.reshape(16, 4, 64).transpose(0, 2, 1).copy().view(np.uint32)
    cr, ci = fft_c()
    C = np.stack([cr, ci], axis=1).copy().view(np.uint32)
    return (".p2align 8\n.type fft_table,@object\nfft_table:\n" + hexwords(Fw) + "\n" + hexwords(Tw) + "\n" + hexwords(C)
            + "\n.size fft_table, 23040\n")

def ft_expected():
    T = _cos_tab(1.0); d = np.arange(640)
    M = np.zeros((640, 640), np.uint16)
    M[0] = T[0]; M[1] = T[(320 * d) % 640]
    for p in range(1, 320):
        M[2 * p] = T[(p * d) % 640]; M[2 * p + 1] = T[(p * d + 160) % 640]
    return M
```

```python
import sys, json
sys.path.insert(0, "gen")
from k1 import emit_k1
from kf import emit_kf, KF_LDS
from kg import emit_kg, KG_LDS
import tables

HDR = """; Layer: out = x + irfft2(rfft2(LN(x)) * W) + ((LN(x) Wg) * (LN(x) Wu)) Wd      (bf16 in/out, S = 2048, D = 640, F = 1728)
"""

def kernel_block(name, body):
    return f""".globl {name}
.p2align 8
.type {name},@function
{name}:
{body}
"""

def kd_block(name, vgpr=256, sgpr=102):
    return f""".p2align 6
.amdhsa_kernel {name}
  .amdhsa_next_free_vgpr {vgpr}
  .amdhsa_next_free_sgpr {sgpr}
  .amdhsa_accum_offset {vgpr}
  .amdhsa_group_segment_fixed_size 0
  .amdhsa_kernarg_size 80
  .amdhsa_user_sgpr_count 2
  .amdhsa_user_sgpr_kernarg_segment_ptr 1
  .amdhsa_system_sgpr_workgroup_id_x 1
  .amdhsa_float_denorm_mode_32 3
.end_amdhsa_kernel
"""

ALL = {"k1": ("k1_kernel", emit_k1, 256, 512, 163840),
       "kf": ("kf_kernel", emit_kf, 81, 256, KF_LDS),
       "kg": ("kg_kernel", emit_kg, 256, 256, KG_LDS)}

def build(cfg, kernels):
    txt = HDR
    for name, fn, grid, block, lds in kernels:
        txt += f"; @launch kernel={name} grid=({grid},1,1) block=({block},1,1) lds={lds}\n"
    txt += '.amdgcn_target "amdgcn-amd-amdhsa--gfx950"\n.text\n'
    done = []
    for name, fn, grid, block, lds in kernels:
        if name in done: continue
        done.append(name)
        body, nops = fn(name, cfg)
        print(f"{name}: {body.count(chr(10))} lines, {nops} inserted wait states", file=sys.stderr)
        txt += kernel_block(name, body)
    txt += '.section .rodata,"a"\n'
    for name in done: txt += kd_block(name)
    txt += tables.ft_table_asm() + "\n" + tables.gf_table_asm() + "\n" + tables.fft_table_asm()
    return txt

if __name__ == "__main__":
    out = sys.argv[1]
    cfg = json.loads(sys.argv[2]) if len(sys.argv) > 2 else {}
    cfg.setdefault("stamp_base", 0x1400000)
    ks = [ALL[k] for k in cfg.get("kernels", "k1,kf,kg").split(",")]
    open(out, "w").write(build(cfg, ks))
```

```python
import re

def v(i, n=1):
    return f"v{i}" if n == 1 else f"v[{i}:{i+n-1}]"

def s(i, n=1):
    return f"s{i}" if n == 1 else f"s[{i}:{i+n-1}]"

_REG = re.compile(r"(?<![\w.])(-|\|)?([vsa])(\d+|\[(\d+):(\d+)\])")

def regs_of(tok):
    out = set()
    tok = tok.strip()
    if tok in ("vcc", "vcc_lo", "vcc_hi"):
        return {("s", "vcc")}
    if tok == "exec":
        return {("s", "exec")}
    if tok == "m0":
        return {("s", "m0")}
    m = re.fullmatch(r"-?\|?(?:abs\()?([vsa])(?:(\d+)|\[(\d+):(\d+)\])\)?\|?", tok)
    if m:
        k = m.group(1)
        if m.group(2) is not None:
            out.add((k, int(m.group(2))))
        else:
            for r in range(int(m.group(3)), int(m.group(4)) + 1):
                out.add((k, r))
    return out

TRANS = ("v_exp_f32", "v_log_f32", "v_rcp_f32", "v_rsq_f32", "v_sqrt_f32", "v_sin_f32", "v_cos_f32", "v_rcp_iflag_f32")

class Ins:
    __slots__ = ("text", "op", "ops", "kind", "w", "r", "passes", "srcc", "dpp", "states", "lds_dma", "wide_store", "data")
    def __init__(self, text):
        self.text = text
        t = text.split(";")[0].strip()
        parts = t.split(None, 1)
        self.op = parts[0]
        rest = parts[1] if len(parts) > 1 else ""
        toks = [x.strip() for x in rest.split(",")] if rest else []
        mods = ""
        if toks:
            lt = toks[-1].split(None, 1)
            toks[-1] = lt[0]
            mods = lt[1] if len(lt) > 1 else ""
        clean = []
        for i, x in enumerate(toks):
            clean.append(x)
        joined = rest
        m = re.search(r"\s(op_sel|op_sel_hi|neg_lo|neg_hi|quad_perm|offset|offset0|offset1|row_|bank_mask|row_mask|offen|idxen|lds|sc0|sc1|nt|cbsz|abid|blgp|off\b|clamp|mul:|div:|bound_ctrl|wave_|dst_sel|src0_sel|src1_sel|dst_unused)", " " + joined)
        if m:
            opnd = (" " + joined)[:m.start()].strip()
            mods = (" " + joined)[m.start():]
        else:
            opnd = joined
            mods = ""
        toks = [x.strip() for x in opnd.split(",") if x.strip()]
        self.ops = toks
        self.w = set(); self.r = set(); self.passes = 0; self.srcc = set()
        self.dpp = ("quad_perm" in mods or "row_" in mods.replace("row_mask", "") or "wave_" in mods)
        self.states = 1
        self.lds_dma = False; self.wide_store = False; self.data = set()
        op = self.op
        R = regs_of
        if op == "s_nop":
            self.kind = "nop"; self.states = int(toks[0], 0) + 1
        elif op.startswith("v_mfma"):
            self.kind = "mfma"
            self.passes = 8 if "32x32x16" in op else 4
            self.w = R(toks[0]); self.r = R(toks[1]) | R(toks[2]) | R(toks[3]); self.srcc = R(toks[3])
        elif op.startswith("v_cmp"):
            self.kind = "valu"; self.w = R(toks[0])
            for x in toks[1:]: self.r |= R(x)
        elif op in ("v_readfirstlane_b32", "v_readlane_b32"):
            self.kind = "valu"; self.w = R(toks[0])
            for x in toks[1:]: self.r |= R(x)
        elif op.startswith("v_permlane") and "swap" in op:
            self.kind = "valu"; self.w = R(toks[0]) | R(toks[1]); self.r = set(self.w)
        elif op.startswith("v_"):
            self.kind = "valu"
            self.w = R(toks[0])
            srcs = toks[1:]
            if op.startswith(("v_add_co", "v_sub_co", "v_addc_co", "v_subb_co", "v_subrev_co", "v_div_scale", "v_mad_u64_u32")):
                self.w |= R(toks[1]); srcs = toks[2:]
            for x in srcs: self.r |= R(x)
            if op.startswith(("v_fmac", "v_mac", "v_dot2c", "v_pk_fmac", "v_writelane")):
                self.r |= R(toks[0])
            if op.startswith("v_cndmask") and len(toks) == 3:
                self.r.add(("s", "vcc"))
        elif op.startswith("ds_"):
            self.kind = "ds"
            if op.startswith(("ds_read", "ds_bpermute", "ds_permute", "ds_swizzle")) or "_rtn" in op:
                self.w = R(toks[0])
                for x in toks[1:]: self.r |= R(x)
            else:
                for x in toks: self.r |= R(x)
        elif op.startswith(("buffer_", "global_")):
            self.kind = "vmem"
            is_lds = re.search(r"\blds\b", mods) is not None or "load_lds" in op
            if op in ("buffer_inv", "buffer_wbl2"):
                pass
            elif is_lds:
                self.lds_dma = True
                for x in toks: self.r |= R(x)
                self.r.add(("s", "m0"))
            elif "load" in op:
                self.w = R(toks[0])
                for x in toks[1:]: self.r |= R(x)
            elif "atomic" in op:
                for x in toks: self.r |= R(x)
                if "sc0" in mods: self.w = R(toks[0])
            else:
                for x in toks: self.r |= R(x)
                d = toks[0] if op.startswith("buffer_") else toks[1]
                self.data = R(d)
                self.wide_store = op.endswith(("x4", "x3"))
        elif op.startswith("s_"):
            self.kind = "salu"
            nodst = ("s_cmp", "s_cbranch", "s_branch", "s_waitcnt", "s_barrier", "s_endpgm", "s_sleep", "s_setprio", "s_bitcmp")
            if op.startswith(nodst):
                for x in toks: self.r |= R(x)
            else:
                if toks: self.w = R(toks[0])
                for x in toks[1:]: self.r |= R(x)
                if "saveexec" in op: self.w.add(("s", "exec"))
        else:
            raise ValueError("unknown op: " + text)


class State:
    def __init__(self):
        self.valu_w = {}; self.trans_w = {}; self.mfma_w = {}; self.mfma_rc = {}
        self.valu_sw = {}; self.store_d = {}; self.m0 = None
        self.mfma_cd = {}
        self.dl_w = {}
    def copy(self):
        o = State()
        for k in ("valu_w", "trans_w", "mfma_w", "mfma_rc", "valu_sw", "store_d", "mfma_cd", "dl_w"):
            setattr(o, k, dict(getattr(self, k)))
        o.m0 = self.m0
        return o
    def merge(self, b):
        for k in ("valu_w", "trans_w", "valu_sw", "store_d", "dl_w"):
            d = getattr(self, k)
            for r, e in getattr(b, k).items():
                d[r] = min(d.get(r, 99), e)
        for k in ("mfma_w", "mfma_rc"):
            d = getattr(self, k)
            for r, (e, p) in getattr(b, k).items():
                if r not in d or (e - (12 if p == 8 else 8)) < (d[r][0] - (12 if d[r][1] == 8 else 8)):
                    d[r] = (e, p)
        for r, x in b.mfma_cd.items():
            if self.mfma_cd.get(r) != x:
                self.mfma_cd[r] = None
        if b.m0 is not None:
            self.m0 = b.m0 if self.m0 is None else min(self.m0, b.m0)
    def advance(self, n):
        for k in ("valu_w", "trans_w", "valu_sw", "store_d", "dl_w"):
            d = getattr(self, k)
            for r in list(d):
                d[r] += n
                if d[r] > 24: del d[r]
        for k in ("mfma_w", "mfma_rc"):
            d = getattr(self, k)
            for r in list(d):
                e, p = d[r]
                if e + n > 24: del d[r]
                else: d[r] = (e + n, p)
        if self.m0 is not None:
            self.m0 += n
            if self.m0 > 8: self.m0 = None
    def need(self, i):
        n = 0
        def req(d, regs, gap):
            nonlocal n
            for r in regs:
                if r in d: n = max(n, gap - d[r])
        def reqm(d, regs, g4, g8):
            nonlocal n
            for r in regs:
                if r in d:
                    e, p = d[r]
                    n = max(n, (g8 if p == 8 else g4) - e)
        if i.kind == "mfma":
            req(self.valu_w, i.r, 2)
            req(self.dl_w, i.r, 3)
            ab = i.r - i.srcc if i.srcc != i.w else (regs_of(i.ops[1]) | regs_of(i.ops[2]))
            reqm(self.mfma_w, regs_of(i.ops[1]) | regs_of(i.ops[2]), 8, 12)
            key = (frozenset(i.srcc), i.passes)
            for r in i.srcc:
                if r in self.mfma_w and self.mfma_cd.get(r) != key:
                    e, p = self.mfma_w[r]
                    n = max(n, (10 if p == 8 else 6) - e)
        elif i.kind == "valu":
            reqm(self.mfma_w, i.r | i.w, 8, 12)
            reqm(self.mfma_rc, i.w, 3, 7)
            if i.op.startswith("v_dot2"):
                req(self.dl_w, regs_of(i.ops[1]) | regs_of(i.ops[2]), 3)
            else:
                req(self.dl_w, i.r | i.w, 3)
            if i.op not in TRANS: req(self.trans_w, i.r, 1)
            sread = {r for r in i.r if r[0] == "s"}
            req(self.valu_sw, sread, 4 if i.op in ("v_readlane_b32", "v_writelane_b32") else 2)
            if i.op in ("v_readfirstlane_b32", "v_readlane_b32"): req(self.valu_w, i.r, 1)
            if i.op.startswith("v_permlane") or i.dpp: req(self.valu_w, i.r, 2)
            req(self.store_d, i.w, 2)
        elif i.kind in ("ds", "vmem"):
            req(self.dl_w, i.r | i.w, 3)
            reqm(self.mfma_w, i.r | i.w, 8, 12)
            req(self.valu_sw, {r for r in i.r if r[0] == "s"}, 5)
            req(self.store_d, i.w, 1)
            if i.lds_dma and self.m0 is not None: n = max(n, 1 - self.m0)
        elif i.kind == "salu":
            req(self.valu_sw, {r for r in i.r if r[0] == "s"}, 1)
        return max(n, 0)
    def commit(self, i):
        self.advance(i.states)
        if i.kind == "mfma":
            key = (frozenset(i.w), i.passes)
            for r in i.w:
                self.mfma_w[r] = (0, i.passes); self.mfma_cd[r] = key
                self.valu_w.pop(r, None)
            for r in i.srcc: self.mfma_rc[r] = (0, i.passes)
        elif i.kind == "valu":
            for r in i.w:
                if r[0] == "s": self.valu_sw[r] = 0
                else:
                    self.valu_w[r] = 0; self.mfma_w.pop(r, None)
                    if i.op.startswith("v_dot2"): self.dl_w[r] = 0
                    else: self.dl_w.pop(r, None)
                    if i.op in TRANS: self.trans_w[r] = 0
                    else: self.trans_w.pop(r, None)
        elif i.kind == "vmem":
            if i.wide_store:
                for r in i.data: self.store_d[r] = 0
        elif i.kind == "salu":
            if ("s", "m0") in i.w: self.m0 = 0


class Asm:
    def __init__(self):
        self.L = []
    def __call__(self, *lines):
        for t in lines:
            for x in t.split("\n"):
                x = x.strip()
                if x: self.L.append(x)
    def raw(self, t):
        self.L.append(("raw", t))
    def label(self, n):
        self.L.append(n + ":")
    def finish(self):
        items = self.L
        labels = {}
        for idx, x in enumerate(items):
            if isinstance(x, str) and x.endswith(":"): labels[x[:-1]] = idx
        parsed = [None if (not isinstance(x, str) or x.endswith(":") or x.startswith((";", "."))) else Ins(x) for x in items]
        extra = [0] * (len(items) + 1)
        entry = {}
        def run(start_state, idx, limit_states=None, record=True):
            st = start_state
            used = 0
            j = idx
            while j < len(items):
                x = items[j]
                if isinstance(x, str) and x.endswith(":"):
                    if record and x[:-1] in entry: st.merge(entry[x[:-1]])
                    j += 1; continue
                ins = parsed[j]
                if ins is None:
                    j += 1; continue
                st.advance(extra[j])
                used += extra[j]
                nd = st.need(ins)
                if nd > 0:
                    if record:
                        extra[j] += nd; st.advance(nd); nnop[0] += nd
                    else:
                        return nd
                st.commit(ins)
                used += ins.states
                if ins.op.startswith(("s_cbranch", "s_branch")):
                    tgt = ins.ops[0]
                    if tgt in labels:
                        if labels[tgt] > j:
                            if record:
                                if tgt in entry: entry[tgt].merge(st)
                                else: entry[tgt] = st.copy()
                        elif record:
                            while True:
                                need = run(st.copy(), labels[tgt], 26, False)
                                if not need: break
                                extra[j] += need; st.advance(need); nnop[0] += need
                    if ins.op == "s_branch":
                        if not record: return 0
                        st = State()
                if ins.op == "s_endpgm":
                    if not record: return 0
                    st = State()
                if limit_states is not None and used > limit_states: return 0
                j += 1
            return 0
        nnop = [0]
        run(State(), 0)
        out = []
        for idx, x in enumerate(items):
            n = extra[idx]
            while n > 0:
                k = min(n, 16); out.append(f"    s_nop {k-1}"); n -= k
            if isinstance(x, tuple): out.append(x[1])
            elif x.endswith(":"): out.append(x)
            else: out.append("    " + x)
        self.nops = nnop[0]
        return "\n".join(out) + "\n"


def gstamp(a, cfg, kernel_idx, idx, wave_s, ws_srd, vt, wg_s=2, clock=False):
    if not cfg.get("stamps"): return
    base = cfg["stamp_base"] + kernel_idx * 512 * 8 * 64 + idx * 4
    a("s_memtime s[90:91]" if clock else "s_memrealtime s[90:91]", "s_waitcnt lgkmcnt(0)")
    a(f"v_mov_b32 v{vt[0]}, s90", f"s_lshl_b32 s92, s{wg_s}, 3", f"s_add_u32 s92, s92, s{wave_s}", "s_lshl_b32 s92, s92, 6",
      f"s_add_u32 s92, s92, {base}", f"v_mov_b32 v{vt[1]}, s92",
      f"buffer_store_dword v{vt[0]}, v{vt[1]}, s[{ws_srd}:{ws_srd+3}], 0 offen")
```

```python
from asmlib import *
from layout import *

STAGE = 49152
SIDE = 3 * STAGE
MU_OFF = SIDE
SPIN_LIMIT = 1 << 16

MU_OFF = SIDE + 12288
RS_OFF = MU_OFF + 1024
CS_OFF = RS_OFF + 1024

S_X, S_WA, S_WB, S_WS, S_MI = 8, 12, 16, 20, 24
sWAVE, sRB, sCB, sV = 28, 29, 30, 31
sFILL, sKX, sKW, sIT, sM0X, sM0W, sDELTA, sRD = 32, 33, 34, 35, 36, 37, 38, 39
sT0, sT1, sT2, sT3, sT4, sT5 = 40, 41, 42, 43, 44, 45
sDBG = 50
sWR, sWI, sWD = 52, 54, 56
sC0, sC1 = 58, 59
sKB, sNG, sTID = 62, 63, 46
sNEG, sPOS = 74, 75

vLANE, vE8, vC8, vT0, vT1, vT2, vT3 = 1, 2, 3, 4, 5, 6, 7


def srd(a, base_s, ptr_lo, nrec, sub=0):
    if sub:
        a(f"s_sub_u32 s{base_s}, s{ptr_lo}, {sub}", f"s_subb_u32 s{base_s+1}, s{ptr_lo+1}, 0")
    else:
        a(f"s_mov_b32 s{base_s}, s{ptr_lo}", f"s_mov_b32 s{base_s+1}, s{ptr_lo+1}")
    a(f"s_mov_b32 s{base_s+2}, {nrec}", f"s_mov_b32 s{base_s+3}, 0x00020000")


def stamp(a, idx, cfg, clock=False, vt=(30, 31)):
    if not cfg.get("stamps"): return
    a("s_memtime s[70:71]" if clock else "s_memrealtime s[70:71]", "s_waitcnt lgkmcnt(0)")
    a(f"v_mov_b32 v{vt[0]}, s70", f"s_lshl_b32 s72, s2, 3", f"s_add_u32 s72, s72, s{sWAVE}", "s_lshl_b32 s72, s72, 6",
      f"s_add_u32 s72, s72, {cfg['stamp_base'] + idx*4}", f"v_mov_b32 v{vt[1]}, s72",
      f"buffer_store_dword v{vt[0]}, v{vt[1]}, s[{S_WS}:{S_WS+3}], 0 offen")


def interleave(a, mfmas, fillers, every=1, start=0):
    k = 0
    for j, m in enumerate(mfmas):
        a(m)
        if j >= start and (j - start) % every == 0 and k < len(fillers):
            a(fillers[k]); k += 1
    while k < len(fillers):
        a(fillers[k]); k += 1


vXR = 8
vWR = 10
vSET = [32, 80]
vACC = 128


def prefetch(a, dft, cfg):
    w = sWAVE
    a(f"s_lshr_b32 s{sT5}, s2, 3", f"s_and_b32 s{sT3}, s{sT5}, 3", f"s_lshr_b32 s{sT4}, s{sT5}, 2")
    a(f"s_lshr_b32 s{sT0}, s{sRB}, 1", f"s_and_b32 s{sT0}, s{sT0}, 1", f"s_lshl_b32 s{sT0}, s{sT0}, 10",
      f"s_and_b32 s{sT1}, s{sRB}, 1", f"s_lshl_b32 s{sT1}, s{sT1}, 8", f"s_add_u32 s{sT0}, s{sT0}, s{sT1}",
      f"s_lshr_b32 s{sT1}, s{sRB}, 2", f"s_lshl_b32 s{sT1}, s{sT1}, 5", f"s_add_u32 s{sT0}, s{sT0}, s{sT1}",
      f"s_lshl_b32 s{sT1}, s{sT4}, 2", f"s_add_u32 s{sT0}, s{sT0}, s{sT1}")
    a(f"v_bfe_u32 v24, v{vLANE}, 2, 1", "v_lshlrev_b32 v24, 3, v24", f"v_and_b32 v25, 3, v{vLANE}", "v_add_u32 v24, v24, v25", "v_lshlrev_b32 v24, 6, v24",
      f"v_bfe_u32 v25, v{vLANE}, 3, 2", "v_add_u32 v24, v24, v25", f"v_add_u32 v24, s{sT0}, v24", "v_mul_u32_u24 v24, 1280, v24",
      f"v_lshrrev_b32 v25, 5, v{vLANE}", "v_lshlrev_b32 v25, 7, v25", f"s_lshl_b32 s{sT0}, s{w}, 8", f"s_add_u32 s{sT0}, s{sT0}, 256",
      f"v_add_u32 v25, s{sT0}, v25", "v_add_u32 v24, v24, v25")
    a(f"buffer_load_dword v20, v24, s[{S_X}:{S_X+3}], 0 offen")
    if not dft:
        a(f"s_lshr_b32 s{sT0}, s{w}, 1", f"s_lshl_b32 s{sT0}, s{sT0}, 8", f"s_add_u32 s{sT0}, s{sT0}, s{sT3}", f"s_add_u32 s{sT0}, s{sT0}, 128",
          f"v_lshlrev_b32 v24, 2, v{vLANE}", f"v_add_u32 v24, s{sT0}, v24", "v_mul_u32_u24 v24, 3456, v24",
          f"s_lshl_b32 s{sT0}, s{sCB}, 7", f"v_add_u32 v24, s{sT0}, v24",
          f"s_and_b32 s{sT0}, s{w}, 1", f"s_cmp_eq_u32 s{sT0}, 0", "s_cbranch_scc0 L_pf_u")
        a(f"buffer_load_dword v21, v24, s[{S_WA}:{S_WA+3}], 0 offen", "s_branch L_pf_done")
        a.label("L_pf_u")
        a(f"buffer_load_dword v21, v24, s[{S_WB}:{S_WB+3}], 0 offen offset:2048")
        a.label("L_pf_done")
    else:
        a(f"s_sub_u32 s{sT0}, s{sCB}, 27", f"s_lshl_b32 s{sT0}, s{sT0}, 7", f"s_lshl_b32 s{sT1}, s{sT3}, 5", f"s_add_u32 s{sT0}, s{sT0}, s{sT1}",
          f"v_and_b32 v24, 31, v{vLANE}", f"v_add_u32 v24, s{sT0}, v24", "v_mul_u32_u24 v24, 1280, v24", "v_add_u32 v24, v24, v25")
        a(f"buffer_load_dword v21, v24, s[{S_WA}:{S_WA+3}], 0 offen")
    if cfg.get("prefetch_gf", 1):
        a(f"s_cmp_ge_u32 s{w}, 2", "s_cbranch_scc0 L_pf_nogf" + ("D" if dft else "G"))
        a("s_getpc_b64 s[76:77]", "s_add_u32 s76, s76, gf_table@rel32@lo+4", "s_addc_u32 s77, s77, gf_table@rel32@hi+12")
        srd(a, 80, 76, 40 * NKB_Q * 1024)
        a(f"s_and_b32 s{sT0}, s2, 1", f"s_mul_i32 s{sT0}, s{sT0}, {20*NKB_Q*1024}",
          f"s_lshl_b32 s{sT1}, s{sT5}, 14", f"s_add_u32 s{sT0}, s{sT0}, s{sT1}", f"s_sub_u32 s{sT1}, s{w}, 2", f"s_lshl_b32 s{sT1}, s{sT1}, 13",
          f"s_add_u32 s{sT0}, s{sT0}, s{sT1}", f"v_lshlrev_b32 v24, 7, v{vLANE}", f"v_add_u32 v24, s{sT0}, v24")
        a("buffer_load_dword v22, v24, s[80:83], 0 offen")
        a.label("L_pf_nogf" + ("D" if dft else "G"))


def mfma_path(a, dft, cfg):
    tag = "D" if dft else "G"
    w = sWAVE
    if cfg.get("prio"): a(f"s_setprio {cfg['prio']}")
    i16, g = vT0, vT1
    a(f"v_and_b32 v{i16}, 15, v{vLANE}", f"v_lshrrev_b32 v{g}, 4, v{vLANE}", f"s_lshl_b32 s{sM0X}, s{w}, 13")
    if not dft:
        a(f"v_lshrrev_b32 v{vT2}, 1, v{i16}", f"v_lshlrev_b32 v{vT3}, 7, v{i16}")
    else:
        a(f"v_lshrrev_b32 v{vT2}, 2, v{i16}", f"v_lshlrev_b32 v{vT3}, 3, v{vT2}", f"v_and_b32 v14, 3, v{i16}",
          f"v_or_b32 v{vT3}, v{vT3}, v14", f"v_lshlrev_b32 v{vT3}, 7, v{vT3}",
          f"v_lshlrev_b32 v{vT2}, 1, v{vT2}", f"v_bfe_u32 v14, v{i16}, 1, 1", f"v_or_b32 v{vT2}, v{vT2}, v14")
    a(f"v_add_u32 v{vT3}, s{sM0X}, v{vT3}")
    for kk in range(2):
        a(f"v_or_b32 v14, {4*kk}, v{g}", f"v_xor_b32 v14, v14, v{vT2}", f"v_lshlrev_b32 v14, 4, v14", f"v_add_u32 v{vXR+kk}, v{vT3}, v14")
    if not dft:
        a(f"v_lshrrev_b32 v14, 5, v{vLANE}", f"v_lshlrev_b32 v14, 12, v14",
          f"v_and_b32 v15, 1, v{g}", f"v_lshlrev_b32 v16, 3, v15", f"v_lshrrev_b32 v17, 2, v{i16}", f"v_add_u32 v16, v16, v17",
          f"v_lshlrev_b32 v16, 7, v16", f"v_add_u32 v14, v14, v16",
          f"v_and_b32 v16, 3, v{vLANE}", f"v_lshlrev_b32 v16, 3, v16", f"v_add_u32 v14, v14, v16", f"v_add_u32 v14, 32768, v14",
          f"v_lshrrev_b32 v17, 1, v17", f"v_lshlrev_b32 v15, 1, v15", f"v_or_b32 v15, v15, v17")
        for cf in range(4):
            a(f"v_xor_b32 v16, {cf}, v15", f"v_lshlrev_b32 v16, 5, v16", f"v_add_u32 v{vWR+cf}, v14, v16")
        nWR = 4
    else:
        a(f"v_lshrrev_b32 v14, 1, v{i16}", f"v_lshlrev_b32 v15, 7, v{i16}", f"v_add_u32 v15, 32768, v15")
        for kk in range(2):
            a(f"v_or_b32 v16, {4*kk}, v{g}", f"v_xor_b32 v16, v16, v14", f"v_lshlrev_b32 v16, 4, v16", f"v_add_u32 v{vWR+kk}, v15, v16")
        nWR = 2
    for r in range(128): a(f"v_mov_b32 v{vACC+r}, 0")
    for r in range(48): a(f"v_mov_b32 v{vSET[0]+r}, 0")
    a(f"s_mov_b32 s{sIT}, 0", f"s_mov_b32 s{sRD}, 0", f"s_mov_b32 s{sNEG}, {-2*STAGE & 0xffffffff}", f"s_mov_b32 s{sPOS}, {STAGE}")
    if cfg.get("prefetch", 0): prefetch(a, dft, cfg)
    stamp(a, 1, cfg)

    def xoff(xi): return (xi >> 1) * 4096 + (xi & 1) * 512 if dft else xi * 2048
    def reads(kk, st):
        X = vSET[st]; W = X + 16
        L = []
        if cfg.get("abl_nords"): return L
        for xi in range(4):
            L.append(f"ds_read_b128 v[{X+4*xi}:{X+4*xi+3}], v{vXR+kk} offset:{xoff(xi)}")
        for wf in range(8):
            if dft:
                L.append(f"ds_read_b128 v[{W+4*wf}:{W+4*wf+3}], v{vWR+kk} offset:{wf*2048}")
            else:
                mat, cf = wf >> 2, wf & 3
                for rho in range(2):
                    L.append(f"ds_read_b64_tr_b16 v[{W+4*wf+2*rho}:{W+4*wf+2*rho+1}], v{vWR+cf} offset:{kk*8192+mat*2048+rho*512}")
        return L
    def mfmas(st):
        X = vSET[st]; W = X + 16
        L = []
        for wf in range(8):
            for xi in range(4):
                T = vACC + 4 * (wf * 4 + xi)
                xo = f"v[{X+4*xi}:{X+4*xi+3}]"; wo = f"v[{W+4*wf}:{W+4*wf+3}]"
                A_, B_ = (xo, wo) if dft else (wo, xo)
                L.append(f"v_mfma_f32_16x16x32_bf16 v[{T}:{T+3}], {A_}, {B_}, v[{T}:{T+3}]")
        return L

    a.label(f"L_loop{tag}")
    a("s_waitcnt lgkmcnt(0)", "s_barrier")
    if cfg.get("loopstamps"):
        a("s_memrealtime s[70:71]", "s_waitcnt lgkmcnt(0)", "v_mov_b32 v30, s70", "s_lshl_b32 s72, s2, 3", f"s_add_u32 s72, s72, s{sWAVE}",
          "s_lshl_b32 s72, s72, 6", f"s_lshl_b32 s73, s{sIT}, 2", "s_add_u32 s72, s72, s73",
          f"s_add_u32 s72, s72, {cfg['stamp_base'] + 16}", "v_mov_b32 v31, s72",
          f"buffer_store_dword v30, v31, s[{S_WS}:{S_WS+3}], 0 offen")
    interleave(a, mfmas(0), reads(0, 1))
    a("s_waitcnt lgkmcnt(0)")
    upd = [f"s_add_u32 s{sRD}, s{sRD}, {STAGE}", f"s_cmp_eq_u32 s{sRD}, {3*STAGE}",
           f"s_cselect_b32 s{sDELTA}, s{sNEG}, s{sPOS}", f"s_cselect_b32 s{sRD}, 0, s{sRD}"]
    upd += [f"v_add_u32 v{vXR+kk}, s{sDELTA}, v{vXR+kk}" for kk in range(2)]
    upd += [f"v_add_u32 v{vWR+k}, s{sDELTA}, v{vWR+k}" for k in range(nWR)]
    upd += [f"s_add_u32 s{sIT}, s{sIT}, 1"]
    interleave(a, mfmas(1), reads(1, 0) + upd)
    a(f"s_cmp_lt_u32 s{sIT}, 10", f"s_cbranch_scc1 L_loop{tag}")
    a("s_waitcnt lgkmcnt(0)")
    for m in mfmas(0): a(m)
    stamp(a, 2, cfg)

    st = cfg.get("k1_store", "")
    if not dft:
        a(f"s_lshl_b32 s{sT0}, s{w}, 8", f"v_lshlrev_b32 v{vT2}, 2, v{i16}", f"v_add_u32 v{vT2}, s{sT0}, v{vT2}",
          f"v_add_u32 v{vT2}, {MU_OFF}, v{vT2}")
        for xi in range(4):
            a(f"ds_read_b32 v{32+2*xi}, v{vT2} offset:{xi*64}", f"ds_read_b32 v{33+2*xi}, v{vT2} offset:{1024+xi*64}")
        a(f"v_lshlrev_b32 v{vT3}, 4, v{g}", f"v_add_u32 v{vT3}, {CS_OFF}, v{vT3}")
        CS = 48
        for mat in range(2):
            for cf in range(4):
                a(f"ds_read_b128 v[{CS+16*mat+4*cf}:{CS+16*mat+4*cf+3}], v{vT3} offset:{(64*mat+16*cf)*4}")
        a(f"s_lshl_b32 s{sT0}, s{sRB}, 4", f"s_lshl_b32 s{sT1}, s{w}, 2", f"s_add_u32 s{sT0}, s{sT0}, s{sT1}",
          f"s_mul_i32 s{sT0}, s{sT0}, {NKB}", f"s_lshl_b32 s{sT1}, s{sCB}, 1", f"s_add_u32 s{sT0}, s{sT0}, s{sT1}",
          f"s_lshl_b32 s{sT0}, s{sT0}, 10", f"s_add_u32 s{sT0}, s{sT0}, {WS_AF}", f"v_lshlrev_b32 v{vT2}, 4, v{vLANE}")
        a("s_waitcnt lgkmcnt(0)")
        for xi in range(4):
            a(f"v_mul_f32 v{33+2*xi}, v{33+2*xi}, v{33+2*xi}")
        for xi in range(4):
            mr = f"v[{32+2*xi}:{33+2*xi}]"
            for q in range(2):
                D = 40 + 4 * (q & 1)
                for c in range(2):
                    cf = 2 * q + c
                    G = vACC + 4 * (cf * 4 + xi); U = vACC + 4 * ((4 + cf) * 4 + xi)
                    for p in range(2):
                        g2 = f"v[{G+2*p}:{G+2*p+1}]"; u2 = f"v[{U+2*p}:{U+2*p+1}]"
                        a(f"v_pk_fma_f32 {g2}, v[{CS+4*cf+2*p}:{CS+4*cf+2*p+1}], {mr}, {g2} op_sel_hi:[1,0,1] neg_lo:[0,1,0] neg_hi:[0,1,0]")
                        a(f"v_pk_fma_f32 {u2}, v[{CS+16+4*cf+2*p}:{CS+16+4*cf+2*p+1}], {mr}, {u2} op_sel_hi:[1,0,1] neg_lo:[0,1,0] neg_hi:[0,1,0]")
                    for p in range(2):
                        g2 = f"v[{G+2*p}:{G+2*p+1}]"; u2 = f"v[{U+2*p}:{U+2*p+1}]"
                        a(f"v_pk_mul_f32 {g2}, {g2}, {u2}")
                    for p in range(2):
                        g2 = f"v[{G+2*p}:{G+2*p+1}]"
                        a(f"v_pk_mul_f32 {g2}, {g2}, {mr} op_sel:[0,1] op_sel_hi:[1,1]")
                    U0 = vACC + 4 * ((4 + 2 * q) * 4 + xi)
                    for p in range(2):
                        a(f"v_cvt_pk_bf16_f32 v{U0+2*c+p}, v{G+2*p}, v{G+2*p+1}")
                a(f"s_add_u32 s{sT1}, s{sT0}, {xi*NKB*1024 + q*1024}")
                a(f"buffer_store_dwordx4 v[{U0}:{U0+3}], v{vT2}, s[{S_WS}:{S_WS+3}], s{sT1} offen {st}")
    else:
        a(f"s_lshl_b32 s{sT0}, s{w}, 8", f"v_lshlrev_b32 v{vT2}, 5, v{g}", f"v_add_u32 v{vT2}, s{sT0}, v{vT2}",
          f"v_add_u32 v{vT2}, {MU_OFF}, v{vT2}")
        for q in range(2):
            MU, RS = 32 + 16 * q, 40 + 16 * q
            a(f"ds_read_b128 v[{MU}:{MU+3}], v{vT2} offset:{q*128}", f"ds_read_b128 v[{MU+4}:{MU+7}], v{vT2} offset:{q*128+16}",
              f"ds_read_b128 v[{RS}:{RS+3}], v{vT2} offset:{1024+q*128}", f"ds_read_b128 v[{RS+4}:{RS+7}], v{vT2} offset:{1024+q*128+16}")
        a(f"s_sub_u32 s{sT1}, s{sCB}, 27", f"s_lshl_b32 s{sT1}, s{sT1}, 7", f"v_add_u32 v16, s{sT1}, v{i16}",
          f"v_cmp_eq_u32 vcc, 0, v16", "v_mov_b32 v18, 0", "v_mov_b32 v19, 0x44200000", "v_cndmask_b32 v18, v18, v19, vcc")
        a(f"s_lshl_b32 s{sT0}, s{sRB}, 5", f"s_lshl_b32 s{sT2}, s{w}, 3", f"s_add_u32 s{sT0}, s{sT0}, s{sT2}",
          f"s_mul_i32 s{sT0}, s{sT0}, {640*16}", f"s_add_u32 s{sT0}, s{sT0}, {WS_P2}",
          f"v_mul_u32_u24 v{vT3}, {640*16}, v{g}", f"v_lshlrev_b32 v16, 4, v16", f"v_add_u32 v{vT3}, v{vT3}, v16")
        a("s_waitcnt lgkmcnt(0)")
        n = 0
        for q in range(2):
            MU, RS = 32 + 16 * q, 40 + 16 * q
            for wf in range(8):
                D = 64 + 4 * (n % 8); n += 1
                for u in range(2):
                    T = vACC + 4 * (wf * 4 + 2 * q + u)
                    for p in range(2):
                        r2 = f"v[{T+2*p}:{T+2*p+1}]"
                        if wf == 0:
                            a(f"v_pk_fma_f32 {r2}, v[{MU+4*u+2*p}:{MU+4*u+2*p+1}], v[18:19], {r2} op_sel_hi:[1,0,1] neg_lo:[0,1,0] neg_hi:[0,1,0]")
                        a(f"v_pk_mul_f32 {r2}, {r2}, v[{RS+4*u+2*p}:{RS+4*u+2*p+1}]")
                    for p in range(2):
                        a(f"v_cvt_pk_bf16_f32 v{D+2*u+p}, v{T+2*p}, v{T+2*p+1}")
                a(f"s_add_u32 s{sT1}, s{sT0}, {4*q*640*16 + wf*256}")
                a(f"buffer_store_dwordx4 v[{D}:{D+3}], v{vT3}, s[{S_WS}:{S_WS+3}], s{sT1} offen {st}")
    stamp(a, 3, cfg)
    stamp(a, 15, cfg, clock=True)
    a("s_endpgm")


class VM:
    def __init__(self, a): self.a = a; self.ops = []
    def op(self, text, tag): self.a(text); self.ops.append(tag)
    def wait(self, *tags):
        last = max(i for i, t in enumerate(self.ops) if t in tags)
        n = len(self.ops) - 1 - last
        self.a(f"s_waitcnt vmcnt({min(n, 63)})")


def loader_path(a, dft, cfg):
    tag = "D" if dft else "G"
    V = sV
    vm = VM(a)
    vXD, vWD = 8, 16
    vST, vCS, vRL = 24, 36, 64
    vRA, vZ, vTAG, vFA = 58, 59, 96, 98
    S_RA, S_RB = 76, 80
    sRO, sRS = 84, 85
    a(f"s_sub_u32 s{V}, s{sWAVE}, 4")
    if not dft:
        a(f"s_lshl_b32 s{sT0}, s{V}, 4", f"v_add_u32 v{vT0}, s{sT0}, v{vE8}", f"v_mul_u32_u24 v{vT0}, 3456, v{vT0}",
          f"s_lshl_b32 s{sT0}, s{sCB}, 7", f"v_add_u32 v{vT0}, s{sT0}, v{vT0}",
          f"v_bfe_u32 v{vT3}, v{vE8}, 1, 1", f"v_lshlrev_b32 v{vT3}, 1, v{vT3}", f"v_xor_b32 v{vT3}, v{vT3}, v{vC8}",
          f"v_lshlrev_b32 v{vT2}, 4, v{vT3}", f"v_add_u32 v{vWD}, v{vT0}, v{vT2}",
          f"v_xor_b32 v{vT3}, 4, v{vT3}", f"v_lshlrev_b32 v{vT3}, 4, v{vT3}", f"v_add_u32 v{vWD+1}, v{vT0}, v{vT3}",
          f"v_add_u32 v{vWD+1}, {8*3456-1024}, v{vWD+1}")
    else:
        a(f"s_sub_u32 s{sT0}, s{sCB}, 27", f"s_lshl_b32 s{sT0}, s{sT0}, 7", f"s_lshl_b32 s{sT1}, s{V}, 5",
          f"s_add_u32 s{sT0}, s{sT0}, s{sT1}", f"v_add_u32 v{vT0}, s{sT0}, v{vE8}", f"v_mul_u32_u24 v{vT0}, 1280, v{vT0}",
          f"v_lshrrev_b32 v{vT1}, 1, v{vE8}", f"v_xor_b32 v{vT1}, v{vT1}, v{vC8}", f"v_xor_b32 v{vT2}, 4, v{vT1}",
          f"v_lshlrev_b32 v{vT1}, 4, v{vT1}", f"v_lshlrev_b32 v{vT2}, 4, v{vT2}")
        for i in range(4):
            a(f"v_add_u32 v{vWD+i}, v{vT0}, v{vT2 if i & 1 else vT1}")
            c = i * 8 * 1280 - i * 1024
            if c: a(f"v_add_u32 v{vWD+i}, {c}, v{vWD+i}")
    a(f"s_lshl_b32 s{sM0X}, s{V}, 13", f"s_lshl_b32 s{sM0W}, s{V}, 12", f"s_add_u32 s{sM0W}, s{sM0W}, 32768")
    kwstep = 128 if dft else 64 * 3456

    def stage_w(k):
        base = (k % 3) * STAGE
        a(f"s_mov_b32 s{sKW}, {k*kwstep}", f"s_add_u32 m0, s{sM0W}, {base}")
        for i in range(4):
            if dft: t = f"buffer_load_dwordx4 v{vWD+i}, s[{S_WA}:{S_WA+3}], s{sKW} offen offset:{i*1024} lds"
            else:
                sr = S_WA if i < 2 else S_WB
                t = f"buffer_load_dwordx4 v{vWD+(i&1)}, s[{sr}:{sr+3}], s{sKW} offen offset:{i*1024} lds"
            vm.op(t, f"S{k}")
    def stage_x(k):
        base = (k % 3) * STAGE
        a(f"s_mov_b32 s{sKX}, {k*128}")
        for h in range(2):
            a(f"s_add_u32 m0, s{sM0X}, {base + h*4096}", "s_nop 0")
            for i in range(4 * h, 4 * h + 4):
                vm.op(f"buffer_load_dwordx4 v{vXD+i}, s[{S_X}:{S_X+3}], s{sKX} offen offset:{(i&3)*1024} lds", f"S{k}")
    def stage(k): stage_w(k); stage_x(k)
    def rl(i):
        sr = S_RA if i < 4 else S_RB
        if i == 4: a(f"s_mov_b32 s{sRO}, 0")
        vm.op(f"buffer_load_dwordx4 v[{vRL+4*i}:{vRL+4*i+3}], v{vRA}, s[{sr}:{sr+3}], s{sRO} offen", "RL")
        a(f"s_add_u32 s{sRO}, s{sRO}, s{sRS}")

    stage_w(0)
    a(f"s_lshr_b32 s{sT4}, s{sRB}, 1", f"s_and_b32 s{sT4}, s{sT4}, 1", f"s_lshl_b32 s{sT4}, s{sT4}, 10",
      f"s_and_b32 s{sT1}, s{sRB}, 1", f"s_lshl_b32 s{sT1}, s{sT1}, 8", f"s_add_u32 s{sT4}, s{sT4}, s{sT1}",
      f"s_lshr_b32 s{sT1}, s{sRB}, 2", f"s_lshl_b32 s{sT1}, s{sT1}, 5", f"s_add_u32 s{sT4}, s{sT4}, s{sT1}",
      f"s_lshl_b32 s{sT1}, s{V}, 3", f"s_add_u32 s{sT0}, s{sT4}, s{sT1}")
    a(f"v_lshrrev_b32 v{vT0}, 2, v{vE8}", f"v_lshlrev_b32 v{vT0}, 3, v{vT0}", f"v_and_b32 v{vT1}, 3, v{vE8}",
      f"v_add_u32 v{vT0}, v{vT0}, v{vT1}", f"v_lshlrev_b32 v{vT0}, 6, v{vT0}", f"v_add_u32 v{vT0}, s{sT0}, v{vT0}",
      f"v_mul_u32_u24 v{vT0}, 1280, v{vT0}")
    for i in range(8):
        if not dft:
            if i == 0: a(f"v_lshrrev_b32 v{vT1}, 1, v{vE8}", f"v_xor_b32 v{vT1}, v{vT1}, v{vC8}")
            x = 4 * (i & 1)
        else:
            if i == 0: a(f"v_bfe_u32 v{vT1}, v{vE8}, 1, 1", f"v_xor_b32 v{vT1}, v{vT1}, v{vC8}")
            x = 2 * (i & 3)
        c = i * 1280 - (i & 3) * 1024
        if x: a(f"v_xor_b32 v{vT2}, {x}, v{vT1}", f"v_lshlrev_b32 v{vT2}, 4, v{vT2}")
        else: a(f"v_lshlrev_b32 v{vT2}, 4, v{vT1}")
        if c: a(f"v_add_u32 v{vT2}, {c}, v{vT2}")
        a(f"v_add_u32 v{vXD+i}, v{vT0}, v{vT2}")
    stage_x(0)
    stage(1)
    stamp(a, 1, cfg, vt=(126, 127))
    a(f"v_lshrrev_b32 v{vT0}, 5, v{vLANE}", f"s_lshl_b32 s{sT0}, s{V}, 1", f"v_add_u32 v{vT0}, s{sT0}, v{vT0}")
    a(f"v_lshrrev_b32 v{vT1}, 2, v{vT0}", f"v_lshlrev_b32 v{vT1}, 3, v{vT1}", f"v_and_b32 v{vT2}, 3, v{vT0}",
      f"v_add_u32 v{vT1}, v{vT1}, v{vT2}", f"v_lshlrev_b32 v{vT1}, 6, v{vT1}", f"s_add_u32 s{sT0}, s{sT4}, s{sCB}",
      f"v_add_u32 v{vT1}, s{sT0}, v{vT1}", f"v_mul_u32_u24 v{vT1}, 1280, v{vT1}",
      f"v_and_b32 v{vT2}, 31, v{vLANE}", f"v_lshlrev_b32 v{vT2}, 3, v{vT2}", f"v_add_u32 v{vT1}, v{vT1}, v{vT2}",
      f"v_mov_b32 v20, v{vT0}")
    for i in range(5):
        vm.op(f"buffer_load_dwordx2 v[{vST+2*i}:{vST+2*i+1}], v{vT1}, s[{S_X}:{S_X+3}], 0 offen offset:{i*256}", "ST")
    if not dft:
        a(f"s_cmp_lt_u32 s{V}, 2", f"s_cselect_b32 s{S_MI}, s{S_WA}, s{sC0}", f"s_cselect_b32 s{S_MI+1}, s{S_WA+1}, s{sC1}",
          f"s_mov_b32 s{S_MI+2}, {640*3456}", f"s_mov_b32 s{S_MI+3}, 0x00020000")
        a(f"s_mul_i32 s{sT0}, s{sRB}, 80", f"s_and_b32 s{sT1}, s{V}, 1", f"s_mul_i32 s{sT1}, s{sT1}, 40", f"s_add_u32 s{sT0}, s{sT0}, s{sT1}",
          f"v_add_u32 v{vT0}, s{sT0}, v{vE8}", f"v_mul_u32_u24 v{vT0}, 3456, v{vT0}",
          f"s_lshl_b32 s{sT0}, s{sCB}, 7", f"v_add_u32 v{vT0}, s{sT0}, v{vT0}", f"v_lshlrev_b32 v{vT1}, 4, v{vC8}",
          f"v_add_u32 v{vT0}, v{vT0}, v{vT1}", f"s_mov_b32 s{sT0}, 0")
        for i in range(5):
            vm.op(f"buffer_load_dwordx4 v[{vCS+4*i}:{vCS+4*i+3}], v{vT0}, s[{S_MI}:{S_MI+3}], s{sT0} offen", "CS")
            a(f"s_add_u32 s{sT0}, s{sT0}, {8*3456}")
    a(f"s_cmp_eq_u32 s{V}, 3", "s_cbranch_scc1 L_l_wp3" + tag)
    a(f"s_cmp_eq_u32 s{V}, 2", "s_cbranch_scc1 L_l_v2" + tag)
    a(f"s_lshl_b32 s{sT0}, s2, 1", f"s_add_u32 s{sT0}, s{sT0}, s{V}", "s_branch L_l_wd" + tag)
    a.label("L_l_v2" + tag)
    a("s_cmp_lt_u32 s2, 96", "s_cbranch_scc1 L_l_wp2" + tag)
    a(f"s_add_u32 s{sT0}, s2, {512-96}")
    a.label("L_l_wd" + tag)
    a(f"s_cmp_lt_u32 s{sT0}, 540", f"s_cselect_b32 s{sTID}, 0, 2", f"s_cselect_b32 s{sT2}, {1728*1280}, 0")
    a(f"s_mul_i32 s{sKB}, s{sT0}, 6554", f"s_lshr_b32 s{sKB}, s{sKB}, 16", f"s_mul_i32 s{sT1}, s{sKB}, 10", f"s_sub_u32 s{sNG}, s{sT0}, s{sT1}")
    a(f"s_mov_b32 s{S_RA}, s{sWD}", f"s_mov_b32 s{S_RA+1}, s{sWD+1}", f"s_mov_b32 s{S_RA+2}, s{sT2}", f"s_mov_b32 s{S_RA+3}, 0x00020000")
    srd(a, S_RB, sWD, 0)
    a(f"s_lshl_b32 s{sT0}, s{sKB}, 5", f"v_add_u32 v{vRA}, s{sT0}, v{vE8}", f"v_mul_u32_u24 v{vRA}, 1280, v{vRA}",
      f"s_lshl_b32 s{sT0}, s{sNG}, 7", f"v_add_u32 v{vRA}, s{sT0}, v{vRA}", f"v_lshlrev_b32 v{vT3}, 4, v{vC8}", f"v_add_u32 v{vRA}, v{vRA}, v{vT3}",
      f"s_mov_b32 s{sRS}, {8*1280}", "s_branch L_l_rl_set" + tag)
    a.label("L_l_wp2" + tag)
    a(f"s_add_u32 s{sT0}, s2, 256", "s_branch L_l_wp" + tag)
    a.label("L_l_wp3" + tag)
    a(f"s_mov_b32 s{sT0}, s2")
    a.label("L_l_wp" + tag)
    a(f"s_mov_b32 s{sTID}, 1")
    a(f"s_mul_i32 s{sKB}, s{sT0}, 5958", f"s_lshr_b32 s{sKB}, s{sKB}, 16",
      f"s_mul_i32 s{sT1}, s{sKB}, 11", f"s_sub_u32 s{sNG}, s{sT0}, s{sT1}", f"s_lshl_b32 s{sNG}, s{sNG}, 5", f"s_min_u32 s{sNG}, s{sNG}, 289")
    a(f"s_and_b32 s{sT0}, s{sKB}, 1", f"s_lshl_b32 s{sT0}, s{sT0}, 4", f"s_lshr_b32 s{sT1}, s{sKB}, 4", f"s_lshl_b32 s{sT1}, s{sT1}, 5",
      f"s_add_u32 s{sT0}, s{sT0}, s{sT1}", f"s_lshr_b32 s{sT1}, s{sKB}, 2", f"s_and_b32 s{sT1}, s{sT1}, 3", f"s_lshl_b32 s{sT1}, s{sT1}, 9",
      f"s_add_u32 s{sT0}, s{sT0}, s{sT1}", f"s_lshr_b32 s{sT1}, s{sKB}, 1", f"s_and_b32 s{sT1}, s{sT1}, 1", f"s_lshl_b32 s{sT1}, s{sT1}, 8",
      f"s_add_u32 s{sT0}, s{sT0}, s{sT1}")
    a(f"v_lshrrev_b32 v{vRA}, 4, v{vLANE}", f"v_bfe_u32 v{vT3}, v{vLANE}, 2, 2", f"v_lshlrev_b32 v{vT3}, 6, v{vT3}",
      f"v_add_u32 v{vRA}, v{vRA}, v{vT3}", f"v_add_u32 v{vRA}, s{sT0}, v{vRA}", f"v_mul_u32_u24 v{vRA}, 642, v{vRA}",
      f"s_lshl_b32 s{sT0}, s{sNG}, 1", f"v_add_u32 v{vRA}, s{sT0}, v{vRA}", f"v_and_b32 v{vT3}, 3, v{vLANE}", f"v_lshlrev_b32 v{vT3}, 4, v{vT3}",
      f"v_add_u32 v{vRA}, v{vRA}, v{vT3}")
    for sr, ptr in ((S_RA, sWR), (S_RB, sWI)):
        srd(a, sr, ptr, 2048 * 642)
    a(f"s_mov_b32 s{sRS}, {4*642}")
    a.label("L_l_rl_set" + tag)
    a(f"s_mov_b32 s{sRO}, 0")
    srd(a, S_MI, sDBG, 256)
    a(f"v_mov_b32 v{vZ}, 0")
    a("s_cmp_eq_u32 s2, 0", f"s_cselect_b32 s{sT0}, 1, 0", f"s_cmp_eq_u32 s{V}, 0", f"s_cselect_b32 s{sT0}, s{sT0}, 0",
      f"s_cmp_eq_u32 s{sT0}, 1", "s_cbranch_scc0 L_l_notag" + tag)
    a(f"s_mov_b32 s{sT0}, {WS_STAT + 8}", f"buffer_load_dwordx2 v[60:61], v{vZ}, s[{S_WS}:{S_WS+3}], s{sT0} offen sc1")
    a(f"v_lshlrev_b32 v{vT0}, 7, v{vLANE}", f"v_add_u32 v{vT0}, {WS_CNT}, v{vT0}", f"v_cmp_gt_u32 vcc, 32, v{vLANE}", "v_mov_b32 v62, 0x7f000000",
      f"v_cndmask_b32 v{vT0}, v62, v{vT0}, vcc", f"buffer_store_dword v{vZ}, v{vT0}, s[{S_WS}:{S_WS+3}], 0 offen")
    a("s_waitcnt vmcnt(1)", "v_add_co_u32 v60, vcc, 1, v60", "v_addc_co_u32 v61, vcc, 0, v61, vcc", "v_or_b32 v62, v60, v61",
      "v_cmp_eq_u32 vcc, 0, v62", "v_cndmask_b32 v60, v60, 1, vcc")
    a(f"v_cmp_eq_u32 vcc, 0, v{vLANE}", "v_mov_b32 v62, 0x7f000000", f"v_cndmask_b32 v62, v62, v{vZ}, vcc")
    a(f"buffer_store_dwordx2 v[60:61], v62, s[{S_MI}:{S_MI+3}], 0 offen sc1")
    a.label("L_l_notag" + tag)
    def stage_with(k, fill):
        dma = []
        if k is not None and k < 10:
            base = (k % 3) * STAGE
            dma.append(("s", [f"s_mov_b32 s{sKW}, {k*kwstep}", f"s_add_u32 m0, s{sM0W}, {base}"]))
            for i in range(4):
                if dft: t_ = f"buffer_load_dwordx4 v{vWD+i}, s[{S_WA}:{S_WA+3}], s{sKW} offen offset:{i*1024} lds"
                else:
                    sr = S_WA if i < 2 else S_WB
                    t_ = f"buffer_load_dwordx4 v{vWD+(i&1)}, s[{sr}:{sr+3}], s{sKW} offen offset:{i*1024} lds"
                dma.append(("v", t_))
            for h in range(2):
                dma.append(("s", ([f"s_mov_b32 s{sKX}, {k*128}"] if h == 0 else []) + [f"s_add_u32 m0, s{sM0X}, {base + h*4096}"]))
                for i in range(4 * h, 4 * h + 4):
                    dma.append(("v", f"buffer_load_dwordx4 v{vXD+i}, s[{S_X}:{S_X+3}], s{sKX} offen offset:{(i&3)*1024} lds"))
        nv = sum(1 for kind, _ in dma if kind == "v")
        per = -(-len(fill) // nv) if nv else len(fill)
        j = 0
        def emit(n):
            nonlocal j
            for _ in range(n):
                if j < len(fill):
                    x = fill[j]; j += 1
                    if callable(x): x()
                    else: a(x)
        for kind, x in dma:
            if kind == "s":
                for y in x: a(y)
            else:
                vm.op(x, f"S{k}"); emit(per)
        emit(len(fill))

    def red32(r):
        L = [f"v_add_f32_dpp v{r}, v{r}, v{r} {mod} row_mask:0xf bank_mask:0xf" for mod in ("quad_perm:[1,0,3,2]", "quad_perm:[2,3,0,1]", "row_half_mirror", "row_ror:8")]
        return L + [f"v_mov_b32 v{vT0}, v{r}", f"v_permlane16_swap_b32 v{r}, v{vT0}", f"v_add_f32 v{r}, v{r}, v{vT0}"]

    F_stat = [lambda: vm.wait("ST"), "v_mov_b32 v21, 0", "v_mov_b32 v22, 0"]
    for i in range(10):
        F_stat += [f"v_lshlrev_b32 v{vT0}, 16, v{vST+i}", f"v_and_b32 v{vT1}, 0xffff0000, v{vST+i}", f"v_add_f32 v21, v21, v{vT0}", f"v_add_f32 v22, v22, v{vT1}"]
    F_stat += ["v_add_f32 v21, v21, v22"] + red32(21) + [f"v_mul_f32 v100, {np.float32(1/640).view(np.uint32):#x}, v21", "v_mov_b32 v21, 0", "v_mov_b32 v23, 0"]
    for i in range(10):
        F_stat += [f"v_lshlrev_b32 v{vT0}, 16, v{vST+i}", f"v_and_b32 v{vT1}, 0xffff0000, v{vST+i}",
                   f"v_sub_f32 v{vT0}, v{vT0}, v100", f"v_sub_f32 v{vT1}, v{vT1}, v100",
                   f"v_fmac_f32 v21, v{vT0}, v{vT0}", f"v_fmac_f32 v23, v{vT1}, v{vT1}"]
    F_stat += ["v_add_f32 v21, v21, v23"] + red32(21)
    F_stat += [f"v_mov_b32 v101, {np.float32(1e-5).view(np.uint32):#x}", f"v_fmac_f32 v101, {np.float32(1/640).view(np.uint32):#x}, v21", "v_rsq_f32 v101, v101"]
    C = 24
    F_cs = []
    if not dft:
        F_cs = [lambda: vm.wait("CS")] + [f"v_mov_b32 v{C+q}, 0" for q in range(8)]
        for i in range(5):
            for q in range(4):
                r = vCS + 4 * i + q
                F_cs += [f"v_lshlrev_b32 v{vT0}, 16, v{r}", f"v_and_b32 v{vT1}, 0xffff0000, v{r}",
                         f"v_add_f32 v{C+2*q}, v{C+2*q}, v{vT0}", f"v_add_f32 v{C+2*q+1}, v{C+2*q+1}, v{vT1}"]
        F_cs += [f"v_permlane32_swap_b32 v{C+j}, v{C+j+4}" for j in range(4)] + [f"v_add_f32 v{C+j}, v{C+j}, v{C+j+4}" for j in range(4)]
        F_cs += [f"v_permlane16_swap_b32 v{C+j}, v{C+j+2}" for j in range(2)] + [f"v_add_f32 v{C+j}, v{C+j}, v{C+j+2}" for j in range(2)]
        F_cs += [f"v_add_f32_dpp v{C+j}, v{C+j}, v{C+j} row_ror:8 row_mask:0xf bank_mask:0xf" for j in range(2)]
    def tagcheck():
        vm.wait("TAG")
        a(f"s_mov_b32 s{sT1}, 0")
        a.label("L_l_tag" + tag)
        a(f"v_readfirstlane_b32 s60, v{vTAG}", f"v_readfirstlane_b32 s61, v{vTAG+1}", "s_or_b32 s64, s60, s61", "s_cmp_lg_u32 s64, 0",
          "s_cbranch_scc1 L_l_tagged" + tag,
          f"s_add_u32 s{sT1}, s{sT1}, 1", f"s_cmp_ge_u32 s{sT1}, {SPIN_LIMIT}", "s_cbranch_scc1 L_l_tagged" + tag, "s_sleep 2")
        a(f"buffer_load_dwordx2 v[{vTAG}:{vTAG+1}], v{vZ}, s[{S_MI}:{S_MI+3}], 0 offen sc1", "s_waitcnt vmcnt(0)", "s_branch L_l_tag" + tag)
        a.label("L_l_tagged" + tag)
    F_pub = [tagcheck,
             f"s_lshl_b32 s{sT0}, s{sRB}, 8", f"s_lshl_b32 s{sT1}, s{sCB}, 3", f"s_add_u32 s{sT0}, s{sT0}, s{sT1}",
             f"v_add_u32 v{vT0}, s{sT0}, v20", f"v_lshlrev_b32 v{vT0}, 4, v{vT0}", f"v_add_u32 v{vT0}, {WS_STAT}, v{vT0}",
             f"v_and_b32 v{vT1}, 31, v{vLANE}", f"v_cmp_eq_u32 vcc, 0, v{vT1}", "v_mov_b32 v21, 0x7f000000", f"v_cndmask_b32 v{vT0}, v21, v{vT0}, vcc",
             f"v_mov_b32 v102, v{vTAG}", f"v_mov_b32 v103, v{vTAG+1}",
             lambda: vm.op(f"buffer_store_dwordx4 v[100:103], v{vT0}, s[{S_WS}:{S_WS+3}], 0 offen sc1", "PUB")]
    if not dft:
        F_pub += [f"s_lshl_b32 s{sT0}, s{sCB}, 3", f"s_add_u32 s{sT0}, s{sT0}, s{sRB}", f"s_lshl_b32 s{sT0}, s{sT0}, 1",
                  f"s_and_b32 s{sT1}, s{V}, 1", f"s_add_u32 s{sT0}, s{sT0}, s{sT1}", f"s_lshl_b32 s{sT0}, s{sT0}, 10",
                  f"s_lshr_b32 s{sT1}, s{V}, 1", f"s_lshl_b32 s{sT1}, s{sT1}, 9", f"s_add_u32 s{sT0}, s{sT0}, s{sT1}",
                  f"s_add_u32 s{sT0}, s{sT0}, {WS_CSP}", f"v_lshlrev_b32 v{vT2}, 6, v{vC8}", f"v_lshrrev_b32 v{vT3}, 4, v{vLANE}",
                  f"v_lshlrev_b32 v{vT3}, 4, v{vT3}", f"v_add_u32 v{vT2}, v{vT2}, v{vT3}", f"v_add_u32 v{vT2}, s{sT0}, v{vT2}",
                  f"v_and_b32 v{vT3}, 8, v{vLANE}", f"v_cmp_eq_u32 vcc, 0, v{vT3}", f"v_cndmask_b32 v{vT2}, v21, v{vT2}, vcc",
                  f"v_mov_b32 v{C+2}, v{vTAG}", f"v_mov_b32 v{C+3}, v{vTAG+1}",
                  lambda: vm.op(f"buffer_store_dwordx4 v[{C}:{C+3}], v{vT2}, s[{S_WS}:{S_WS+3}], 0 offen sc1", "PUB")]
    FS, FC = 104, 28
    F_fa = [f"s_lshl_b32 s{sT0}, s{sRB}, 8", f"s_lshl_b32 s{sT1}, s{V}, 6", f"s_add_u32 s{sT0}, s{sT0}, s{sT1}", f"s_lshl_b32 s{sT0}, s{sT0}, 4",
            f"s_add_u32 s86, s{sT0}, {WS_STAT}", f"v_lshlrev_b32 v{vFA}, 4, v{vLANE}"]
    if not dft:
        F_fa += [f"s_lshl_b32 s{sT0}, s{sCB}, 14", f"s_lshl_b32 s{sT1}, s{V}, 8", f"s_add_u32 s{sT0}, s{sT0}, s{sT1}", f"s_add_u32 s87, s{sT0}, {WS_CSP}",
                 f"v_and_b32 v{vT0}, 15, v{vLANE}", f"v_lshlrev_b32 v{vT0}, 4, v{vT0}", f"v_lshrrev_b32 v{vT1}, 4, v{vLANE}",
                 f"v_lshlrev_b32 v{vT1}, 12, v{vT1}", f"v_add_u32 v{vFA+1}, v{vT0}, v{vT1}"]
    def fetch(track):
        L = [f"buffer_load_dwordx4 v[{FS}:{FS+3}], v{vFA}, s[{S_WS}:{S_WS+3}], s86 offen sc1"]
        if not dft:
            L += [f"buffer_load_dwordx4 v[{FC+4*r}:{FC+4*r+3}], v{vFA+1}, s[{S_WS}:{S_WS+3}], s87 offen offset:{r*1024} sc1" for r in range(4)]
        for x in L:
            if track: vm.op(x, "F")
            else: a(x)
    def check_and_store():
        vm.wait("F")
        a(f"s_mov_b32 s{sT1}, 0")
        a.label("L_l_chk" + tag)
        a(f"v_xor_b32 v{vT0}, v{FS+2}, v{vTAG}", f"v_xor_b32 v{vT1}, v{FS+3}, v{vTAG+1}", f"v_or_b32 v{vT0}, v{vT0}, v{vT1}")
        if not dft:
            for r in range(4):
                a(f"v_xor_b32 v{vT1}, v{FC+4*r+2}, v{vTAG}", f"v_or_b32 v{vT0}, v{vT0}, v{vT1}",
                  f"v_xor_b32 v{vT1}, v{FC+4*r+3}, v{vTAG+1}", f"v_or_b32 v{vT0}, v{vT0}, v{vT1}")
        a(f"v_cmp_ne_u32 vcc, 0, v{vT0}", "s_cmp_eq_u64 vcc, 0", "s_cbranch_scc1 L_l_got" + tag,
          f"s_add_u32 s{sT1}, s{sT1}, 1", f"s_cmp_ge_u32 s{sT1}, {SPIN_LIMIT}", "s_cbranch_scc1 L_l_got" + tag, "s_sleep 4")
        fetch(False)
        a("s_waitcnt vmcnt(0)", "s_branch L_l_chk" + tag)
        a.label("L_l_got" + tag)
        a(f"s_lshl_b32 s{sT0}, s{V}, 8", f"v_lshlrev_b32 v{vT0}, 2, v{vLANE}", f"v_add_u32 v{vT0}, s{sT0}, v{vT0}", f"v_add_u32 v{vT0}, {MU_OFF}, v{vT0}")
        a(f"ds_write_b32 v{vT0}, v{FS}", f"ds_write_b32 v{vT0}, v{FS+1} offset:1024")
        if not dft:
            for r in range(1, 4): a(f"v_add_f32 v{FC}, v{FC}, v{FC+4*r}", f"v_add_f32 v{FC+1}, v{FC+1}, v{FC+4*r+1}")
            for op in ("v_permlane16_swap_b32", "v_permlane32_swap_b32"):
                a(f"v_mov_b32 v{vT0}, v{FC}", f"v_mov_b32 v{vT1}, v{FC+1}", f"{op} v{FC}, v{vT0}", f"{op} v{FC+1}, v{vT1}",
                  f"v_add_f32 v{FC}, v{FC}, v{vT0}", f"v_add_f32 v{FC+1}, v{FC+1}, v{vT1}")
            a(f"s_lshl_b32 s{sT0}, s{V}, 7", f"v_and_b32 v{vT0}, 15, v{vLANE}", f"v_lshlrev_b32 v{vT0}, 3, v{vT0}", f"v_add_u32 v{vT0}, s{sT0}, v{vT0}",
              f"v_add_u32 v{vT0}, {CS_OFF}, v{vT0}", f"ds_write_b64 v{vT0}, v[{FC}:{FC+1}]")

    sched = cfg.get("k1_sched", {"stat": 3, "cs": 4, "pub": 5, "fetch": 7})
    work = {k: [] for k in range(9)}
    work[0].append(lambda: vm.op(f"buffer_load_dwordx2 v[{vTAG}:{vTAG+1}], v{vZ}, s[{S_MI}:{S_MI+3}], 0 offen sc1", "TAG"))
    abl = cfg.get("abl", "")
    if "s" not in abl:
        work[sched["stat"]] += F_stat
        work[sched["cs"]] += F_cs
        work[sched["pub"]] += F_pub
        work[sched["fetch"] - 1] += F_fa
        work[sched["fetch"]].insert(0, lambda: fetch(True))
    vm.wait("S0"); a("s_barrier")
    for k in range(8):
        stage_with(k + 2, work[k])
        if k == 7 and cfg.get("rl_early") and "r" not in abl:
            for j in range(8): rl(j)
        vm.wait(f"S{k+1}"); a("s_barrier")
    if "s" not in abl: check_and_store()
    if not cfg.get("rl_early") and "r" not in abl:
        for j in range(8): rl(j)
    vm.wait("S9"); a("s_waitcnt lgkmcnt(0)", "s_barrier")
    if "r" in abl: a("s_endpgm")
    a("s_waitcnt vmcnt(0)")
    st = cfg.get("rl_store", "")
    a(f"s_cmp_eq_u32 s{sTID}, 0", "s_cbranch_scc0 L_l_proc_wp" + tag)
    a(f"s_lshl_b32 s{sT0}, s{V}, 12", f"s_add_u32 s{sT0}, s{sT0}, {SIDE}", f"v_lshlrev_b32 v{vT1}, 4, v{vLANE}", f"v_add_u32 v{vT2}, s{sT0}, v{vT1}")
    for i in range(4): a(f"ds_write_b128 v{vT2}, v[{vRL+4*i}:{vRL+4*i+3}] offset:{i*1024}")
    a(f"v_lshrrev_b32 v{vT0}, 4, v{vLANE}", f"v_lshlrev_b32 v{vT0}, 2, v{vT0}",
      f"v_and_b32 v{vT3}, 15, v{vLANE}", f"v_lshrrev_b32 v{vT3}, 2, v{vT3}", f"v_add_u32 v{vT0}, v{vT0}, v{vT3}", f"v_lshlrev_b32 v{vT0}, 7, v{vT0}",
      f"v_and_b32 v{vT3}, 3, v{vLANE}", f"v_lshlrev_b32 v{vT3}, 3, v{vT3}", f"v_add_u32 v{vT0}, v{vT0}, v{vT3}",
      f"v_add_u32 v{vT0}, s{sT0}, v{vT0}", "s_waitcnt lgkmcnt(0)")
    for nbl in range(4):
        for rho in range(2):
            a(f"ds_read_b64_tr_b16 v[{vRL+16+4*nbl+2*rho}:{vRL+16+4*nbl+2*rho+1}], v{vT0} offset:{nbl*32+rho*2048}")
    a(f"s_lshl_b32 s{sT0}, s{sNG}, 2", f"s_mul_i32 s{sT0}, s{sT0}, 54", f"s_add_u32 s{sT0}, s{sT0}, s{sKB}", f"s_lshl_b32 s{sT0}, s{sT0}, 10",
      f"s_add_u32 s{sT0}, s{sT0}, {WS_WDF}", "s_waitcnt lgkmcnt(0)")
    for nbl in range(4):
        a(f"buffer_store_dwordx4 v[{vRL+16+4*nbl}:{vRL+16+4*nbl+3}], v{vT1}, s[{S_WS}:{S_WS+3}], s{sT0} offen {st}", f"s_add_u32 s{sT0}, s{sT0}, {54*1024}")
    a("s_branch L_l_proc_done" + tag)
    a.label("L_l_proc_wp" + tag)
    a(f"s_cmp_eq_u32 s{sTID}, 1", "s_cbranch_scc0 L_l_proc_done" + tag)
    a(f"s_lshl_b32 s{sT2}, s{V}, 14", f"s_add_u32 s{sT2}, s{sT2}, {STAGE}", f"v_lshlrev_b32 v{vT0}, 4, v{vLANE}", f"v_add_u32 v{vT0}, s{sT2}, v{vT0}")
    for j in range(8): a(f"ds_write_b128 v{vT0}, v[{vRL+4*j}:{vRL+4*j+3}] offset:{j*1024}")
    a(f"v_lshlrev_b32 v{vT1}, 6, v{vLANE}", f"v_add_u32 v{vT1}, s{sT2}, v{vT1}", "s_waitcnt lgkmcnt(0)")
    for j in range(8): a(f"ds_read_b128 v[{vRL+4*j}:{vRL+4*j+3}], v{vT1} offset:{(j>>2)*4096 + (j&3)*16}")
    a(f"v_lshlrev_b32 v{vT1}, 2, v{vLANE}", f"v_add_u32 v{vT1}, s{sT2}, v{vT1}", "s_mov_b32 s60, 0x05040100", "s_mov_b32 s61, 0x07060302", "s_waitcnt lgkmcnt(0)")
    for c in range(32):
        a(f"v_perm_b32 v{24+(c&7)}, v{vRL+16+(c>>1)}, v{vRL+(c>>1)}, s{60+(c&1)}")
        a(f"ds_write_b32 v{vT1}, v{24+(c&7)} offset:{8192 + c*256}")
    a("s_waitcnt lgkmcnt(0)")
    for j in range(8): a(f"ds_read_b128 v[{vRL+4*j}:{vRL+4*j+3}], v{vT0} offset:{8192 + j*1024}")
    a(f"s_lshl_b32 s{sT0}, s{sKB}, 8", f"s_lshl_b32 s{sT1}, s{sNG}, 13", f"s_add_u32 s{sT0}, s{sT0}, s{sT1}", f"s_add_u32 s{sT0}, s{sT0}, {WS_WP}",
      f"v_lshrrev_b32 v{vT1}, 4, v{vLANE}", f"v_lshlrev_b32 v{vT1}, 13, v{vT1}", f"v_and_b32 v{vT2}, 15, v{vLANE}", f"v_lshlrev_b32 v{vT2}, 4, v{vT2}",
      f"v_add_u32 v{vT1}, v{vT1}, v{vT2}", "s_waitcnt lgkmcnt(0)")
    for j in range(8):
        a(f"buffer_store_dwordx4 v[{vRL+4*j}:{vRL+4*j+3}], v{vT1}, s[{S_WS}:{S_WS+3}], s{sT0} offen {st}", f"s_add_u32 s{sT0}, s{sT0}, {4*8192}")
    a.label("L_l_proc_done" + tag)
    stamp(a, 3, cfg, vt=(126, 127))
    a("s_endpgm")


def emit_k1(name, cfg):
    a = Asm()
    a("s_cmp_ge_u32 s2, 256", "s_cbranch_scc1 L_k1_exit")
    a(f"s_load_dwordx2 s[4:5], s[0:1], 0", f"s_load_dwordx4 s[64:67], s[0:1], 32", f"s_load_dwordx2 s[6:7], s[0:1], 72",
      f"s_load_dwordx4 s[{sWR}:{sWR+3}], s[0:1], 8", f"s_load_dwordx2 s[{sWD}:{sWD+1}], s[0:1], 48",
      f"s_load_dwordx2 s[{sDBG}:{sDBG+1}], s[0:1], 64")
    a(f"v_lshrrev_b32 v{vT0}, 6, v0", f"v_and_b32 v{vLANE}, 63, v0", f"v_readfirstlane_b32 s{sWAVE}, v{vT0}",
      f"v_lshrrev_b32 v{vE8}, 3, v{vLANE}", f"v_and_b32 v{vC8}, 7, v{vLANE}")
    a(f"s_and_b32 s{sT0}, s2, 1", f"s_lshl_b32 s{sT0}, s{sT0}, 2", f"s_lshr_b32 s{sT1}, s2, 3", f"s_and_b32 s{sT2}, s{sT1}, 3",
      f"s_add_u32 s{sRB}, s{sT0}, s{sT2}",
      f"s_and_b32 s{sT0}, s2, 7", f"s_lshr_b32 s{sT0}, s{sT0}, 1", f"s_lshl_b32 s{sT0}, s{sT0}, 3", f"s_lshr_b32 s{sT1}, s{sT1}, 2",
      f"s_add_u32 s{sCB}, s{sT0}, s{sT1}")
    a("s_getpc_b64 s[68:69]")
    a("s_add_u32 s68, s68, ft_table@rel32@lo+4", "s_addc_u32 s69, s69, ft_table@rel32@hi+12")
    a("s_waitcnt lgkmcnt(0)")
    srd(a, S_X, 4, 2048 * 1280)
    srd(a, S_WS, 6, 0x1800000)
    a(f"s_mov_b32 s{sC0}, s66", f"s_mov_b32 s{sC1}, s67")
    srd(a, S_WB, 66, 640 * 3456 + 2048, sub=2048)
    a(f"s_cmp_ge_u32 s{sCB}, 27")
    a(f"s_cselect_b32 s{S_WA}, s68, s64", f"s_cselect_b32 s{S_WA+1}, s69, s65",
      f"s_mov_b32 s{S_WA+2}, {640*3456}", f"s_cselect_b32 s{S_WA+2}, {640*1280}, s{S_WA+2}", f"s_mov_b32 s{S_WA+3}, 0x00020000")
    stamp(a, 0, cfg)
    stamp(a, 14, cfg, clock=True)
    a(f"s_cmp_ge_u32 s{sWAVE}, 4", "s_cbranch_scc1 L_k1_load")
    a(f"s_cmp_ge_u32 s{sCB}, 27", "s_cbranch_scc1 L_k1_dft")
    mfma_path(a, False, cfg)
    a.label("L_k1_dft")
    mfma_path(a, True, cfg)
    a.label("L_k1_load")
    a(f"s_cmp_ge_u32 s{sCB}, 27", "s_cbranch_scc1 L_k1_load_dft")
    loader_path(a, False, cfg)
    a.label("L_k1_load_dft")
    loader_path(a, True, cfg)
    a.label("L_k1_exit")
    a("s_endpgm")
    return a.finish(), a.nops
```

```python
from asmlib import *
import kf, kg
from k1 import srd
from layout import *

K2_LDS = max(kf.KF_LDS, kg.KG_LDS)

def emit_k2(name, cfg):
    kg.configure(cfg)
    cfg = dict(cfg); cfg["kf_store"] = "sc1"
    a = Asm()
    a("s_cmp_ge_u32 s2, 337", "s_cbranch_scc1 L_k2_exit")
    a("s_cmp_ge_u32 s2, 81", "s_cbranch_scc1 L_k2_gemm")
    if cfg.get("fft_prio"): a(f"s_setprio {cfg['fft_prio']}")
    def finish(a):
        a("s_waitcnt vmcnt(0)", "s_barrier")
        a(f"s_cmp_eq_u32 s{kf.sWAVE}, 0", "s_cbranch_scc0 L_k2_exit")
        a("v_lshlrev_b32 v4, 7, v1", f"v_add_u32 v4, {WS_CNT}, v4", "v_mov_b32 v5, 1", "v_cmp_gt_u32 vcc, 32, v1", "s_and_saveexec_b64 s[46:47], vcc")
        a(f"buffer_atomic_add v5, v4, s[{kf.S_WS}:{kf.S_WS+3}], 0 offen")
        a("s_endpgm")
    kf.kf_body(a, cfg, 2, finish)
    a.label("L_k2_gemm")
    kg.kg_body(a, cfg, 81, fused=True)
    a.label("L_k2_exit")
    a("s_endpgm")
    return a.finish(), a.nops
```

```python
from asmlib import *
from layout import *
from k1 import srd, interleave

ROW = 4160
TAB = 32768 + 1024
KF_LDS = TAB + 24 * 1024

S_WS, S_TB = 8, 12
sWAVE, sG, sGIN, sCOL, sRE, sIM, sMASK = 28, 29, 30, 31, 32, 33, 34
sT0, sT1, sT2, sT3 = 40, 41, 42, 43
vLANE, vE8, vC8, vT0, vT1, vT2, vT3 = 1, 2, 3, 4, 5, 6, 7
vDA = 8
vW = 16
vTM = 48
ACC, OP, FR, FI, NFI, TW, CC = 64, 128, 160, 168, 176, 184, 248

def acc(sg, c): return ACC + 32 * sg + 16 * c
def op(sg, c, t): return OP + 16 * sg + 8 * c + 4 * t
def R(b, n): return f"v[{b}:{b+n-1}]"

MF = "v_mfma_f32_32x32x16_bf16"

def stage_mfmas(data_is_a, conj):
    L = []
    for sg in range(2):
        for c in range(2):
            if c == 0: terms = [(FR, 0), (FI if conj else NFI, 1)]
            else: terms = [(NFI if conj else FI, 0), (FR, 1)]
            first = True
            for cst, dc in terms:
                for t in range(2):
                    d = R(op(sg, dc, t), 4); k = R(cst + 4 * t, 4)
                    A_, B_ = (d, k) if data_is_a else (k, d)
                    D = R(acc(sg, c), 16)
                    L.append(f"{MF} {D}, {A_}, {B_}, {'0' if first else D}")
                    first = False
    return L

BC_LO = "op_sel_hi:[1,0]"
def pkmul_b(d, x, hi): return f"v_pk_mul_f32 {R(d,2)}, {R(x,2)}, {R(CC,2)} " + ("op_sel:[0,1] op_sel_hi:[1,1]" if hi else "op_sel_hi:[1,0]")
def pkfma_b(d, x, hi, s2, neg):
    m = "op_sel:[0,1,0] op_sel_hi:[1,1,1]" if hi else "op_sel_hi:[1,0,1]"
    return f"v_pk_fma_f32 {R(d,2)}, {R(x,2)}, {R(CC,2)}, {R(s2,2)} {m}" + (" neg_lo:[0,0,1] neg_hi:[0,0,1]" if neg else "")

def twiddle(a, conj):
    for p in range(8):
        r = 2 * p
        e0r, e0i, e1r, e1i = acc(0, 0) + r, acc(0, 1) + r, acc(1, 0) + r, acc(1, 1) + r
        t1, t2, mr, mi = vTM + 8 * (p & 1), vTM + 2 + 8 * (p & 1), vTM + 4 + 8 * (p & 1), vTM + 6 + 8 * (p & 1)
        a(pkmul_b(t1, e1i, True), pkmul_b(t2, e1r, True))
        a(pkfma_b(mr, e1r, False, t1, not conj), pkfma_b(mi, e1i, False, t2, conj))
        a(f"v_pk_add_f32 {R(e1r,2)}, {R(e0r,2)}, {R(mr,2)} neg_lo:[0,1] neg_hi:[0,1]",
          f"v_pk_add_f32 {R(e1i,2)}, {R(e0i,2)}, {R(mi,2)} neg_lo:[0,1] neg_hi:[0,1]",
          f"v_pk_add_f32 {R(e0r,2)}, {R(e0r,2)}, {R(mr,2)}", f"v_pk_add_f32 {R(e0i,2)}, {R(e0i,2)}, {R(mi,2)}")
        for sg in range(2):
            ur, ui = acc(sg, 0) + r, acc(sg, 1) + r
            tr, ti = TW + 32 * sg + r, TW + 32 * sg + 16 + r
            a(f"v_pk_mul_f32 {R(t1,2)}, {R(ui,2)}, {R(ti,2)}", f"v_pk_mul_f32 {R(t2,2)}, {R(ur,2)}, {R(ti,2)}")
            ng = " neg_lo:[0,0,1] neg_hi:[0,0,1]"
            a(f"v_pk_fma_f32 {R(ur,2)}, {R(ur,2)}, {R(tr,2)}, {R(t1,2)}" + ("" if conj else ng),
              f"v_pk_fma_f32 {R(ui,2)}, {R(ui,2)}, {R(tr,2)}, {R(t2,2)}" + (ng if conj else ""))
            a(f"v_cvt_pk_bf16_f32 v{op(sg,0,r>>3)+((r&7)>>1)}, v{ur}, v{ur+1}", f"v_cvt_pk_bf16_f32 v{op(sg,1,r>>3)+((r&7)>>1)}, v{ui}, v{ui+1}")

def twiddle_plain(a, conj):
    cr, ci = CC, CC + 1
    for p in range(8):
        for h in range(2):
            r = 2 * p + h
            e0r, e0i, e1r, e1i = acc(0, 0) + r, acc(0, 1) + r, acc(1, 0) + r, acc(1, 1) + r
            b = vTM + 8 * h
            t1, t2, mr, mi = b, b + 1, b + 2, b + 3
            a(f"v_mul_f32 v{t1}, v{e1i}, v{ci}", f"v_mul_f32 v{t2}, v{e1r}, v{ci}")
            a(f"v_fma_f32 v{mr}, v{e1r}, v{cr}, {'' if conj else '-'}v{t1}", f"v_fma_f32 v{mi}, v{e1i}, v{cr}, {'-' if conj else ''}v{t2}")
            a(f"v_sub_f32 v{e1r}, v{e0r}, v{mr}", f"v_sub_f32 v{e1i}, v{e0i}, v{mi}", f"v_add_f32 v{e0r}, v{e0r}, v{mr}", f"v_add_f32 v{e0i}, v{e0i}, v{mi}")
            for sg in range(2):
                ur, ui = acc(sg, 0) + r, acc(sg, 1) + r
                tr, ti = TW + 32 * sg + r, TW + 32 * sg + 16 + r
                a1, a2 = b + 4 + 2 * sg, b + 5 + 2 * sg
                a(f"v_mul_f32 v{a1}, v{ui}, v{ti}", f"v_mul_f32 v{a2}, v{ur}, v{ti}")
                a(f"v_fma_f32 v{ur}, v{ur}, v{tr}, {'' if conj else '-'}v{a1}", f"v_fma_f32 v{ui}, v{ui}, v{tr}, {'-' if conj else ''}v{a2}")
        r = 2 * p
        for sg in range(2):
            ur, ui = acc(sg, 0) + r, acc(sg, 1) + r
            a(f"v_cvt_pk_bf16_f32 v{op(sg,0,r>>3)+((r&7)>>1)}, v{ur}, v{ur+1}", f"v_cvt_pk_bf16_f32 v{op(sg,1,r>>3)+((r&7)>>1)}, v{ui}, v{ui+1}")

def wstage_plain(a):
    for sg in range(2):
        for p in range(8):
            for h in range(2):
                r = 2 * p + h
                xr, xi = acc(sg, 0) + r, acc(sg, 1) + r
                w = vW + 16 * sg + r
                b = vTM + 4 * (h + 2 * (p & 1))
                a(f"v_lshlrev_b32 v{b}, 16, v{w}", f"v_and_b32 v{b+1}, 0xffff0000, v{w}")
                a(f"v_mul_f32 v{b+2}, v{xi}, v{b+1}", f"v_mul_f32 v{b+3}, v{xr}, v{b+1}")
                a(f"v_fma_f32 v{xr}, v{xr}, v{b}, -v{b+2}", f"v_fma_f32 v{xi}, v{xi}, v{b}, v{b+3}")
            r = 2 * p
            xr, xi = acc(sg, 0) + r, acc(sg, 1) + r
            a(f"v_cvt_pk_bf16_f32 v{op(sg,0,r>>3)+((r&7)>>1)}, v{xr}, v{xr+1}", f"v_cvt_pk_bf16_f32 v{op(sg,1,r>>3)+((r&7)>>1)}, v{xi}, v{xi+1}")

def wstage(a):
    for sg in range(2):
        for p in range(8):
            r = 2 * p
            xr, xi = acc(sg, 0) + r, acc(sg, 1) + r
            w = vW + 16 * sg + r
            wr, wi, t1, t2 = vTM + 8 * (p & 1), vTM + 2 + 8 * (p & 1), vTM + 4 + 8 * (p & 1), vTM + 6 + 8 * (p & 1)
            a(f"v_lshlrev_b32 v{wr}, 16, v{w}", f"v_lshlrev_b32 v{wr+1}, 16, v{w+1}",
              f"v_and_b32 v{wi}, 0xffff0000, v{w}", f"v_and_b32 v{wi+1}, 0xffff0000, v{w+1}")
            a(f"v_pk_mul_f32 {R(t1,2)}, {R(xi,2)}, {R(wi,2)}", f"v_pk_mul_f32 {R(t2,2)}, {R(xr,2)}, {R(wi,2)}",
              f"v_pk_fma_f32 {R(xr,2)}, {R(xr,2)}, {R(wr,2)}, {R(t1,2)} neg_lo:[0,0,1] neg_hi:[0,0,1]",
              f"v_pk_fma_f32 {R(xi,2)}, {R(xi,2)}, {R(wr,2)}, {R(t2,2)}")
            a(f"v_cvt_pk_bf16_f32 v{op(sg,0,r>>3)+((r&7)>>1)}, v{xr}, v{xr+1}", f"v_cvt_pk_bf16_f32 v{op(sg,1,r>>3)+((r&7)>>1)}, v{xi}, v{xi+1}")

def kf_body(a, cfg, wg_sreg, finish):
    a(f"s_load_dwordx2 s[6:7], s[0:1], 72")
    a(f"v_lshrrev_b32 v{vT0}, 6, v0", f"v_and_b32 v{vLANE}, 63, v0", f"v_readfirstlane_b32 s{sWAVE}, v{vT0}",
      f"v_lshrrev_b32 v{vE8}, 3, v{vLANE}", f"v_and_b32 v{vC8}, 7, v{vLANE}", f"s_mov_b32 s{sG}, s{wg_sreg}")
    a("s_getpc_b64 s[4:5]", "s_add_u32 s4, s4, fft_table@rel32@lo+4", "s_addc_u32 s5, s5, fft_table@rel32@hi+12")
    srd(a, S_TB, 4, 23040)
    a(f"s_cmp_eq_u32 s{sG}, 80", f"s_cselect_b32 s{sGIN}, 0, s{sG}", f"s_cselect_b32 s{sT0}, 1, 0")
    a(f"s_lshl_b32 s{sRE}, s{sWAVE}, 1", f"s_add_u32 s{sIM}, s{sRE}, 1", f"s_lshl_b32 s{sCOL}, s{sGIN}, 2", f"s_add_u32 s{sCOL}, s{sCOL}, s{sWAVE}")
    a(f"s_cmp_eq_u32 s{sCOL}, 0", f"s_cselect_b32 s{sMASK}, 0, -1", f"s_cselect_b32 s{sT1}, s{sT0}, 0")
    a(f"s_cmp_eq_u32 s{sT1}, 1", f"s_cselect_b32 s{sRE}, 1, s{sRE}", f"s_cselect_b32 s{sCOL}, 320, s{sCOL}")
    a(f"s_lshl_b32 s{sT0}, s{sWAVE}, 6", f"v_add_u32 v{vT0}, s{sT0}, v{vE8}", f"v_mul_u32_u24 v{vT0}, {640*16}, v{vT0}",
      f"s_lshl_b32 s{sT0}, s{sGIN}, 7", f"s_add_u32 s{sT0}, s{sT0}, {WS_P2}", f"v_add_u32 v{vT0}, s{sT0}, v{vT0}",
      f"v_lshrrev_b32 v{vT1}, 1, v{vE8}", f"v_xor_b32 v{vT1}, v{vT1}, v{vC8}", f"v_xor_b32 v{vT2}, 4, v{vT1}",
      f"v_lshlrev_b32 v{vT1}, 4, v{vT1}", f"v_lshlrev_b32 v{vT2}, 4, v{vT2}")
    for i in range(8):
        a(f"v_add_u32 v{vDA+i}, v{vT0}, v{vT2 if i & 1 else vT1}")
        c = i * 8 * 640 * 16 - (i & 3) * 1024
        if c: a(f"v_add_u32 v{vDA+i}, {c}, v{vDA+i}")
    a("s_waitcnt lgkmcnt(0)")
    srd(a, S_WS, 6, 0x1800000)
    gstamp(a, cfg, 1, 0, sWAVE, S_WS, (62, 63))
    a(f"s_lshl_b32 s{sT0}, s{sWAVE}, 13")
    for h in range(2):
        a(f"s_add_u32 m0, s{sT0}, {h*4096}", "s_nop 0")
        for i in range(4 * h, 4 * h + 4):
            a(f"buffer_load_dwordx4 v{vDA+i}, s[{S_WS}:{S_WS+3}], 0 offen offset:{(i&3)*1024} lds")
    a(f"v_lshlrev_b32 v{vT0}, 4, v{vLANE}", f"v_lshlrev_b32 v{vT1}, 3, v{vLANE}", f"s_mul_i32 s{sT1}, s{sWAVE}, 6144", f"s_add_u32 m0, s{sT1}, {TAB}")
    for i in range(6):
        if i == 4: a(f"s_add_u32 s{sT1}, s{sT1}, 4096", f"s_add_u32 m0, s{sT1}, {TAB}", "s_nop 0")
        a(f"buffer_load_dwordx4 v{vT0}, s[{S_TB}:{S_TB+3}], s{sT1} offen offset:{(i&3)*1024} lds")
    a(f"s_mov_b32 s{sT1}, {6144+16384}", f"buffer_load_dwordx2 {R(CC,2)}, v{vT1}, s[{S_TB}:{S_TB+3}], s{sT1} offen")
    a(f"s_lshl_b32 s{sT2}, s{sCOL}, 13", f"s_add_u32 s{sT2}, s{sT2}, {WS_WP}")
    for i in range(8):
        a(f"buffer_load_dwordx4 {R(vW+4*i,4)}, v{vT0}, s[{S_WS}:{S_WS+3}], s{sT2} offen", f"s_add_u32 s{sT2}, s{sT2}, 1024")
    a(f"v_lshrrev_b32 v{vT1}, 1, v{vLANE}", f"v_and_b32 v{vT1}, 7, v{vT1}", f"v_lshlrev_b32 v{vT2}, 7, v{vLANE}",
      f"v_xor_b32 v{vT3}, s{sRE}, v{vT1}", f"v_lshlrev_b32 v{vT3}, 4, v{vT3}", f"v_add_u32 v{vDA}, v{vT2}, v{vT3}",
      f"v_xor_b32 v{vT3}, s{sIM}, v{vT1}", f"v_lshlrev_b32 v{vT3}, 4, v{vT3}", f"v_add_u32 v{vDA+1}, v{vT2}, v{vT3}")
    a(f"v_lshlrev_b32 v{vT0}, 4, v{vLANE}", f"v_add_u32 v{vT0}, {TAB}, v{vT0}")
    a("s_waitcnt vmcnt(9)", "s_barrier")
    for sg in range(2):
        for c in range(2):
            for t in range(2):
                a(f"ds_read_b128 {R(op(sg,c,t),4)}, v{vDA+c} offset:{(2*sg+t)*8192}")
    for i in range(6): a(f"ds_read_b128 {R(FR+4*i,4)}, v{vT0} offset:{i*1024}")
    a("s_waitcnt lgkmcnt(0)")
    for i in range(16): a(f"ds_read_b128 {R(TW+4*i,4)}, v{vT0} offset:{6144+i*1024}")
    for sg in range(2):
        for r in range(8): a(f"v_and_b32 v{op(sg,1,0)+r}, s{sMASK}, v{op(sg,1,0)+r}")
    gstamp(a, cfg, 1, 1, sWAVE, S_WS, (62, 63))
    for m in stage_mfmas(True, False): a(m)
    a("s_waitcnt vmcnt(8) lgkmcnt(0)", "s_barrier")
    gstamp(a, cfg, 1, 4, sWAVE, S_WS, (14, 15))
    plain = cfg.get("fft_plain", 0)
    (twiddle_plain if plain else twiddle)(a, False)
    gstamp(a, cfg, 1, 5, sWAVE, S_WS, (14, 15))
    for m in stage_mfmas(False, False): a(m)
    a("s_waitcnt vmcnt(%d)" % (3 if cfg.get("stamps") else 0))
    gstamp(a, cfg, 1, 6, sWAVE, S_WS, (14, 15))
    (wstage_plain if plain else wstage)(a)
    gstamp(a, cfg, 1, 7, sWAVE, S_WS, (14, 15))
    for m in stage_mfmas(True, True): a(m)
    (twiddle_plain if plain else twiddle)(a, True)
    gstamp(a, cfg, 1, 8, sWAVE, S_WS, (14, 15))
    for m in stage_mfmas(False, True): a(m)
    gstamp(a, cfg, 1, 2, sWAVE, S_WS, (62, 63))
    a(f"s_lshl_b32 s{sT0}, s{sWAVE}, 1", f"s_mul_i32 s{sT0}, s{sT0}, {ROW}", f"v_lshlrev_b32 v{vT0}, 4, v{vLANE}", f"v_add_u32 v{vT0}, s{sT0}, v{vT0}")
    for be in range(2):
        for c in range(2):
            for t in range(2):
                O = op(be, c, t)
                for p in range(4):
                    a(f"v_cvt_pk_bf16_f32 v{O+p}, v{acc(be,c)+8*t+2*p}, v{acc(be,c)+8*t+2*p+1}")
                a(f"ds_write_b128 v{vT0}, {R(O,4)} offset:{c*ROW + (2*be+t)*1024}")
    a("s_waitcnt lgkmcnt(0)", "s_barrier")
    a(f"v_and_b32 v{vT0}, 15, v{vLANE}", f"v_lshrrev_b32 v{vT0}, 2, v{vT0}", f"v_mul_u32_u24 v{vT0}, {ROW}, v{vT0}",
      f"v_lshrrev_b32 v{vT1}, 4, v{vLANE}", f"v_lshlrev_b32 v{vT2}, 5, v{vT1}", f"v_add_u32 v{vT0}, v{vT0}, v{vT2}",
      f"v_and_b32 v{vT2}, 3, v{vLANE}", f"v_lshlrev_b32 v{vT2}, 3, v{vT2}", f"v_add_u32 v{vT0}, v{vT0}, v{vT2}",
      f"s_lshl_b32 s{sT0}, s{sWAVE}, 10", f"v_add_u32 v{vT0}, s{sT0}, v{vT0}")
    for it in range(8):
        for rho in range(2):
            a(f"ds_read_b64_tr_b16 {R(ACC+4*it+2*rho,2)}, v{vT0} offset:{it*128 + rho*4*ROW}")
    a(f"v_mul_u32_u24 v{vT1}, {NKB*1024}, v{vT1}", f"v_and_b32 v{vT2}, 15, v{vLANE}", f"v_lshlrev_b32 v{vT2}, 4, v{vT2}",
      f"v_add_u32 v{vT1}, v{vT1}, v{vT2}",
      f"s_mul_i32 s{sT0}, s{sWAVE}, {32*NKB*1024}", f"s_lshr_b32 s{sT1}, s{sG}, 2", f"s_add_u32 s{sT1}, s{sT1}, {NKB_H}", f"s_lshl_b32 s{sT1}, s{sT1}, 10",
      f"s_add_u32 s{sT0}, s{sT0}, s{sT1}", f"s_and_b32 s{sT1}, s{sG}, 3", f"s_lshl_b32 s{sT1}, s{sT1}, 8", f"s_add_u32 s{sT0}, s{sT0}, s{sT1}",
      f"s_add_u32 s{sT0}, s{sT0}, {WS_AF}", "s_waitcnt lgkmcnt(0)")
    st = cfg.get("kf_store", "")
    for it in range(8):
        a(f"buffer_store_dwordx4 {R(ACC+4*it,4)}, v{vT1}, s[{S_WS}:{S_WS+3}], s{sT0} offen {st}", f"s_add_u32 s{sT0}, s{sT0}, {4*NKB*1024}")
    gstamp(a, cfg, 1, 3, sWAVE, S_WS, (62, 63))
    finish(a)

def emit_kf(name, cfg):
    a = Asm()
    a("s_cmp_ge_u32 s2, 81", "s_cbranch_scc1 L_kf_exit")
    kf_body(a, cfg, 2, lambda a: None)
    a.label("L_kf_exit")
    a("s_endpgm")
    return a.finish(), a.nops
```

```python
from asmlib import *
from layout import *
from k1 import srd

KG_LDS = 4 * 3 * 5 * 1024 + 64
S_WS, S_GF, S_X, S_OUT, S_DBG = 8, 12, 16, 20, 36
sWAVE, sRT, sCT, sKA, sKB, sID = 28, 29, 30, 31, 32, 33
sT0, sT1, sT2 = 40, 41, 42
vLANE, vT0, vT1, vT2 = 1, 2, 3, 4
vCNT = 0
FLAG_OFF = 4 * 3 * 5 * 1024
vA, vBH, vBQ, vL16 = 5, 9, 14, 19
vXR = 20
DEPTH = 4
vFR = 32
vACC = vFR + DEPTH * 36
ACCF = "v"
MF = "v_mfma_f32_16x16x32_bf16"

def R(b, n): return f"v[{b}:{b+n-1}]"
def RA(b, n): return f"{ACCF}[{b}:{b+n-1}]"

def configure(cfg):
    global DEPTH, vACC, ACCF
    DEPTH = cfg.get("kg_depth", 4)
    if DEPTH > 4: ACCF, vACC = "a", 0
    else: ACCF, vACC = "v", vFR + DEPTH * 36

def steps_for(nh, nq): return [("h", i) for i in range(nh)] + [("q", i) for i in range(nq)]

def kg_variant(a, cfg, nh, nq, tag, fused, mask_last):
    from k1 import VM, SPIN_LIMIT
    steps = steps_for(nh, nq)
    n = len(steps)
    vm = VM(a)
    qflag = "sc1" if fused else ""
    def loads(k, which):
        kind, i = steps[k]
        F = vFR + (k % DEPTH) * 36
        L = []
        if which == "A":
            fl = qflag if kind == "q" else cfg.get("kg_aload", "")
            for rb in range(4):
                L.append(f"buffer_load_dwordx4 {R(F+4*rb,4)}, v{vA+rb}, s[{S_WS}:{S_WS+3}], s{sKA} offen {fl}")
        else:
            for nb in range(5):
                if kind == "h": L.append(f"buffer_load_dwordx4 {R(F+16+4*nb,4)}, v{vBH+nb}, s[{S_WS}:{S_WS+3}], s{sKB} offen")
                else: L.append(f"buffer_load_dwordx4 {R(F+16+4*nb,4)}, v{vBQ+nb}, s[{S_GF}:{S_GF+3}], s{sKB} offen")
        return L
    def preB(k):
        kind, i = steps[k]
        if i == 0: a(f"s_mov_b32 s{sKB}, s{sT0 if kind == 'h' else sT1}")
        else: a(f"s_add_u32 s{sKB}, s{sKB}, 1024")
    def preA(k):
        kind, i = steps[k]
        if i == 0:
            if kind == "h": a(f"s_mov_b32 s{sKA}, s{sT0}")
            else: a(f"s_add_u32 s{sKA}, s{sT1}, {NKB_H*1024}")
        else: a(f"s_add_u32 s{sKA}, s{sKA}, 1024")
        if mask_last and kind == "q" and i == nq - 1:
            a("v_mov_b32 v31, 0x7f000000", f"v_cmp_gt_u32 vcc, 16, v{vLANE}")
            for rb in range(4): a(f"v_cndmask_b32 v{vA+rb}, v31, v{vA+rb}, vcc")
    def flag_wait():
        if tag == "p":
            vm.wait("POLL")
            a(f"s_mov_b32 s{sT2}, 0")
            a.label(f"L_kg_poll{tag}")
            a("v_readfirstlane_b32 s44, v31", "s_cmp_ge_u32 s44, 81", f"s_cbranch_scc1 L_kg_go{tag}",
              f"s_add_u32 s{sT2}, s{sT2}, 1", f"s_cmp_ge_u32 s{sT2}, {SPIN_LIMIT}", f"s_cbranch_scc1 L_kg_go{tag}", f"s_sleep {cfg.get('poll_sleep', 2)}",
              f"buffer_load_dword v31, v{vCNT}, s[{S_WS}:{S_WS+3}], 0 offen sc1", "s_waitcnt vmcnt(0)", f"s_branch L_kg_poll{tag}")
            a.label(f"L_kg_go{tag}")
            a("v_mov_b32 v31, 1", f"v_mov_b32 v{vT0}, {FLAG_OFF}", f"ds_write_b32 v{vT0}, v31")
        else:
            a(f"s_mov_b32 s{sT2}, 0", f"v_mov_b32 v{vT0}, {FLAG_OFF}")
            a.label(f"L_kg_poll{tag}")
            a(f"ds_read_b32 v31, v{vT0}", "s_waitcnt lgkmcnt(0)", "v_readfirstlane_b32 s44, v31", "s_cmp_eq_u32 s44, 1", f"s_cbranch_scc1 L_kg_go{tag}",
              f"s_add_u32 s{sT2}, s{sT2}, 1", f"s_cmp_ge_u32 s{sT2}, {SPIN_LIMIT*16}", f"s_cbranch_scc1 L_kg_go{tag}", "s_sleep 1", f"s_branch L_kg_poll{tag}")
            a.label(f"L_kg_go{tag}")
        gstamp(a, cfg, 2, 1, sWAVE, S_WS, (30 + 1, 2), wg_s=sID)
    for k in range(min(DEPTH, n)):
        preB(k); preA(k)
        for x in loads(k, "B") + loads(k, "A"): vm.op(x, f"K{k}")
    for k in range(n):
        vm.wait(f"K{k}")
        if fused and tag == "p" and k == nh - cfg.get("poll_lead", 2):
            vm.op(f"buffer_load_dword v31, v{vCNT}, s[{S_WS}:{S_WS+3}], 0 offen sc1", "POLL")
        F = vFR + (k % DEPTH) * 36
        nxt = k + DEPTH
        lb, la = [], []
        if nxt < n:
            preB(nxt); lb = loads(nxt, "B")
            if not (fused and steps[nxt][0] == "q" and k < nh):
                preA(nxt); la = loads(nxt, "A")
        for nb in range(5):
            for rb in range(4):
                T = vACC + 4 * (nb * 4 + rb)
                c = "0" if k == 0 else RA(T, 4)
                if not cfg.get("abl_kg_nomfma") or k == 0: a(f"{MF} {RA(T,4)}, {R(F+16+4*nb,4)}, {R(F+4*rb,4)}, {c}")
            if lb: vm.op(lb[nb], f"K{nxt}")
        for x in la: vm.op(x, f"K{nxt}")
        if fused and k == nh - 1:
            flag_wait()
            for j in range(nh, min(nh + DEPTH, n)):
                preA(j)
                for x in loads(j, "A"): vm.op(x, f"K{j}")

def kg_body(a, cfg, first_id, fused=False):
    a(f"s_load_dwordx2 s[4:5], s[0:1], 0", f"s_load_dwordx2 s[6:7], s[0:1], 72", f"s_load_dwordx4 s[24:27], s[0:1], 56")
    a(f"s_sub_u32 s{sID}, s2, {first_id}")
    a(f"v_lshrrev_b32 v{vT0}, 6, v0", f"v_and_b32 v{vLANE}, 63, v0", f"v_readfirstlane_b32 s{sWAVE}, v{vT0}")
    a(f"s_and_b32 s{sT0}, s2, 7", f"s_lshr_b32 s{sT1}, s{sID}, 3",
      f"s_lshr_b32 s{sRT}, s{sT0}, 1", f"s_lshl_b32 s{sRT}, s{sRT}, 3", f"s_and_b32 s{sT2}, s{sT1}, 7", f"s_add_u32 s{sRT}, s{sRT}, s{sT2}",
      f"s_and_b32 s{sCT}, s{sT0}, 1", f"s_lshl_b32 s{sCT}, s{sCT}, 2", f"s_lshr_b32 s{sT2}, s{sT1}, 3", f"s_add_u32 s{sCT}, s{sCT}, s{sT2}")
    a("s_getpc_b64 s[46:47]", "s_add_u32 s46, s46, gf_table@rel32@lo+4", "s_addc_u32 s47, s47, gf_table@rel32@hi+12")
    srd(a, S_GF, 46, 40 * NKB_Q * 1024)
    a(f"v_lshlrev_b32 v{vL16}, 4, v{vLANE}")
    a(f"s_mul_i32 s{sT0}, s{sRT}, {4*NKB*1024}", f"s_add_u32 s{sT0}, s{sT0}, {WS_AF}", f"v_add_u32 v{vA}, s{sT0}, v{vL16}")
    for rb in range(1, 4): a(f"v_add_u32 v{vA+rb}, {NKB*1024}, v{vA+rb-1}")
    a(f"s_mul_i32 s{sT0}, s{sCT}, {5*NKB_H*1024}", f"s_add_u32 s{sT0}, s{sT0}, {WS_WDF}", f"v_add_u32 v{vBH}, s{sT0}, v{vL16}")
    for nb in range(1, 5): a(f"v_add_u32 v{vBH+nb}, {NKB_H*1024}, v{vBH+nb-1}")
    a(f"s_mul_i32 s{sT0}, s{sCT}, {5*NKB_Q*1024}", f"v_add_u32 v{vBQ}, s{sT0}, v{vL16}")
    for nb in range(1, 5): a(f"v_add_u32 v{vBQ+nb}, {NKB_Q*1024}, v{vBQ+nb-1}")
    a("s_waitcnt lgkmcnt(0)")
    srd(a, S_WS, 6, 0x1800000)
    srd(a, S_X, 4, 2048 * 1280)
    srd(a, S_OUT, 24, 2048 * 1280)
    if fused:
        a(f"s_and_b32 s{sT0}, s{sID}, 31", f"s_lshl_b32 s{sT0}, s{sT0}, 7", f"s_add_u32 s{sT0}, s{sT0}, {WS_CNT}", f"v_mov_b32 v{vCNT}, s{sT0}",
          f"v_mov_b32 v{vT0}, {FLAG_OFF}", f"v_mov_b32 v{vT1}, 0", f"ds_write_b32 v{vT0}, v{vT1}", "s_waitcnt lgkmcnt(0)", "s_barrier")
    gstamp(a, cfg, 2, 0, sWAVE, S_WS, (30, 31), wg_s=sID)
    gstamp(a, cfg, 2, 8, sWAVE, S_WS, (30, 31), clock=True, wg_s=sID)
    a(f"s_lshl_b32 s{sT0}, s{sRT}, 6", f"s_lshl_b32 s{sT1}, s{sWAVE}, 4", f"s_add_u32 s{sT0}, s{sT0}, s{sT1}",
      f"v_and_b32 v{vT0}, 15, v{vLANE}", f"v_add_u32 v{vT0}, s{sT0}, v{vT0}")
    a(f"v_bfe_u32 v{vT1}, v{vT0}, 9, 1", f"v_lshlrev_b32 v{vT1}, 4, v{vT1}",
      f"v_bfe_u32 v{vT2}, v{vT0}, 2, 1", f"v_lshlrev_b32 v{vT2}, 3, v{vT2}", f"v_add_u32 v{vT1}, v{vT1}, v{vT2}",
      f"v_bfe_u32 v{vT2}, v{vT0}, 8, 1", f"v_lshlrev_b32 v{vT2}, 2, v{vT2}", f"v_add_u32 v{vT1}, v{vT1}, v{vT2}",
      f"v_and_b32 v{vT2}, 3, v{vT0}", f"v_add_u32 v{vT1}, v{vT1}, v{vT2}", f"v_lshlrev_b32 v{vT1}, 6, v{vT1}",
      f"v_bfe_u32 v{vT2}, v{vT0}, 10, 1", f"v_lshlrev_b32 v{vT2}, 5, v{vT2}", f"v_add_u32 v{vT1}, v{vT1}, v{vT2}",
      f"v_bfe_u32 v{vT2}, v{vT0}, 3, 5", f"v_add_u32 v{vT1}, v{vT1}, v{vT2}", f"v_mul_u32_u24 v{vT1}, 1280, v{vT1}",
      f"s_mul_i32 s{sT0}, s{sCT}, 160", f"v_lshrrev_b32 v{vT2}, 4, v{vLANE}", f"v_lshlrev_b32 v{vT2}, 3, v{vT2}",
      f"v_add_u32 v{vT1}, v{vT1}, v{vT2}", f"v_add_u32 v30, s{sT0}, v{vT1}")
    for nb in range(5):
        a(f"buffer_load_dwordx2 {R(vXR+2*nb,2)}, v30, s[{S_X}:{S_X+3}], 0 offen offset:{nb*32}")
    a(f"s_mul_i32 s{sT0}, s{sWAVE}, {14*1024}", f"s_mul_i32 s{sT1}, s{sWAVE}, {5*1024}")
    a(f"s_cmp_eq_u32 s{sWAVE}, 3", "s_cbranch_scc1 L_kg_v3")
    if fused:
        a(f"s_cmp_eq_u32 s{sWAVE}, 0", "s_cbranch_scc0 L_kg_v12")
        kg_variant(a, cfg, 14, 5, "p", fused, False)
        a("s_branch L_kg_red")
        a.label("L_kg_v12")
    kg_variant(a, cfg, 14, 5, "a", fused, False)
    a("s_branch L_kg_red")
    a.label("L_kg_v3")
    kg_variant(a, cfg, 12, 6, "b", fused, True)
    a.label("L_kg_red")
    gstamp(a, cfg, 2, 2, sWAVE, S_WS, (31, 32), wg_s=sID)
    gstamp(a, cfg, 2, 9, sWAVE, S_WS, (31, 32), clock=True, wg_s=sID)
    for o in range(4):
        a(f"s_cmp_eq_u32 s{sWAVE}, {o}", f"s_cbranch_scc1 L_kg_skip{o}")
        a(f"s_cmp_gt_u32 s{sWAVE}, {o}", f"s_cselect_b32 s{sT0}, 1, 0", f"s_sub_u32 s{sT0}, s{sWAVE}, s{sT0}", f"s_add_u32 s{sT0}, s{sT0}, {o*3}",
          f"s_mul_i32 s{sT0}, s{sT0}, 5120", f"v_add_u32 v{vT0}, s{sT0}, v{vL16}")
        for nb in range(5):
            T = vACC + 4 * (nb * 4 + o)
            a(f"ds_write_b128 v{vT0}, {RA(T,4)} offset:{nb*1024}")
        a.label(f"L_kg_skip{o}")
    a("s_waitcnt lgkmcnt(0)", "s_barrier")
    a(f"s_mul_i32 s{sT0}, s{sWAVE}, {3*5120}", f"v_add_u32 v{vT0}, s{sT0}, v{vL16}")
    for sidx in range(3):
        for nb in range(5):
            a(f"ds_read_b128 {R(vFR+20*sidx+4*nb,4)}, v{vT0} offset:{sidx*5120+nb*1024}")
    for o in range(4):
        a(f"s_cmp_eq_u32 s{sWAVE}, {o}", f"s_cbranch_scc0 L_kg_own{o}")
        for nb in range(5):
            T = vACC + 4 * (nb * 4 + o)
            for r in range(4):
                a(f"v_mov_b32 v{vFR+60+4*nb+r}, v{T+r}" if ACCF == "v" else f"v_accvgpr_read_b32 v{vFR+60+4*nb+r}, a{T+r}")
        a.label(f"L_kg_own{o}")
    a("s_waitcnt lgkmcnt(0)")
    for nb in range(5):
        O = vFR + 60 + 4 * nb
        for sidx in range(3):
            for p in range(2):
                a(f"v_pk_add_f32 {R(O+2*p,2)}, {R(O+2*p,2)}, {R(vFR+20*sidx+4*nb+2*p,2)}")
        for p in range(2):
            x = vXR + 2 * nb + p
            a(f"v_lshlrev_b32 v{vT0}, 16, v{x}", f"v_and_b32 v{vT1}, 0xffff0000, v{x}",
              f"v_add_f32 v{O+2*p}, v{O+2*p}, v{vT0}", f"v_add_f32 v{O+2*p+1}, v{O+2*p+1}, v{vT1}",
              f"v_cvt_pk_bf16_f32 v{x}, v{O+2*p}, v{O+2*p+1}")
        a(f"buffer_store_dwordx2 {R(vXR+2*nb,2)}, v30, s[{S_OUT}:{S_OUT+3}], 0 offen offset:{nb*32}")
    gstamp(a, cfg, 2, 3, sWAVE, S_WS, (31, 32), wg_s=sID)

def emit_kg(name, cfg):
    configure(cfg)
    a = Asm()
    a("s_cmp_ge_u32 s2, 256", "s_cbranch_scc1 L_kg_exit")
    kg_body(a, cfg, 0)
    a.label("L_kg_exit")
    a("s_endpgm")
    return a.finish(), a.nops
```

```python
import sys, json
sys.path.insert(0, "gen")
from k1 import emit_k1
from kf import emit_kf, KF_LDS
from kg import emit_kg, KG_LDS
from k2 import emit_k2, K2_LDS
import tables

HDR = """; Layer: out = x + irfft2(rfft2(LN(x)) * W) + ((LN(x) Wg) * (LN(x) Wu)) Wd      (bf16 in/out, S = 2048, D = 640, F = 1728)
"""

def kernel_block(name, body):
    return f""".globl {name}
.p2align 8
.type {name},@function
{name}:
{body}
"""

def kd_block(name, vgpr=256, sgpr=102, acc=256):
    return f""".p2align 6
.amdhsa_kernel {name}
  .amdhsa_next_free_vgpr {vgpr}
  .amdhsa_next_free_sgpr {sgpr}
  .amdhsa_accum_offset {acc}
  .amdhsa_group_segment_fixed_size 0
  .amdhsa_kernarg_size 80
  .amdhsa_user_sgpr_count 2
  .amdhsa_user_sgpr_kernarg_segment_ptr 1
  .amdhsa_system_sgpr_workgroup_id_x 1
  .amdhsa_float_denorm_mode_32 3
.end_amdhsa_kernel
"""

def emit_empty(name, cfg):
    return "    s_endpgm\n", 0

ALL = {"e": ("empty_kernel", emit_empty, 256, 64, 0), "k1": ("k1_kernel", emit_k1, 256, 512, 163840),
       "kf": ("kf_kernel", emit_kf, 81, 256, KF_LDS),
       "kg": ("kg_kernel", emit_kg, 256, 256, KG_LDS),
       "k2": ("k2_kernel", emit_k2, 337, 256, K2_LDS)}

def build(cfg, kernels):
    txt = HDR
    for name, fn, grid, block, lds in kernels:
        txt += f"; @launch kernel={name} grid=({grid},1,1) block=({block},1,1) lds={lds}\n"
    txt += '.amdgcn_target "amdgcn-amd-amdhsa--gfx950"\n.text\n'
    done = []
    for name, fn, grid, block, lds in kernels:
        if name in done: continue
        done.append(name)
        body, nops = fn(name, cfg)
        print(f"{name}: {body.count(chr(10))} lines, {nops} inserted wait states", file=sys.stderr)
        txt += kernel_block(name, body)
    txt += '.section .rodata,"a"\n'
    for name in done:
        big = name == "kg_kernel" and cfg.get("kg_depth", 4) > 4
        txt += kd_block(name, 336 if big else 256)
    txt += tables.ft_table_asm() + "\n" + tables.gf_table_asm() + "\n" + tables.fft_table_asm()
    return txt

if __name__ == "__main__":
    out = sys.argv[1]
    cfg = json.loads(sys.argv[2]) if len(sys.argv) > 2 else {}
    cfg.setdefault("stamp_base", 0x1400000)
    ks = [ALL[k] for k in cfg.get("kernels", "k1,k2").split(",")]
    open(out, "w").write(build(cfg, ks))
```
